```python
import torch

def _softmax(x, axis=-1):
    return torch.softmax(x, dim=axis)
def _gelu(x):
    return torch.nn.functional.gelu(x, approximate="tanh")
def _silu(x):
    return torch.nn.functional.silu(x)
def _sigmoid(x):
    return torch.sigmoid(x)
def _layernorm(x, axis=-1, eps=1e-5):
    m = x.mean(dim=axis, keepdim=True)
    v = x.var(dim=axis, keepdim=True, unbiased=False)
    return (x - m) / torch.sqrt(v + eps)
def _scatter_add(tgt, idx, src, axis=0):
    return tgt.clone().index_add_(axis, idx, src)
def _segment_sum(src, seg, n):
    out = torch.zeros((n,) + src.shape[1:], dtype=src.dtype)
    return out.index_add_(0, seg, src)
def _pad(x, pw):
    flat = tuple(v for pair in reversed(pw) for v in pair)
    return torch.nn.functional.pad(x, flat)

kernel_name = 'recurrent_scan__sliding_local_dilated__dense_activation_silu__prompt'

def setup_inputs():

    _w = (lambda a: (lambda t: t.to(torch.bfloat16) if t.is_floating_point() else t)(torch.as_tensor(a)))
    def _A_setup():
        B, S, D = 1, 2048, 640
        return {
            "x": _w((lambda *s: torch.randn(*s, dtype=torch.bfloat16) * 0.1)(B, S, D)),
            "wqkv": _w((lambda *s: torch.randn(*s, dtype=torch.bfloat16) * 0.2)(D, 3 * D)),
            "wo": _w((lambda *s: torch.randn(*s, dtype=torch.bfloat16) * 0.4)(D, D)),
        }
    _A_in = _A_setup()

    def _B_setup():
        B, S, D, F = 1, 2048, 640, 1728
        return {
            "x": _w((lambda *s: torch.randn(*s, dtype=torch.bfloat16) * 0.1)(B, S, D)),
            "w1": _w((lambda *s: torch.randn(*s, dtype=torch.bfloat16) * 3.2)(D, F) * (D ** -0.5)),
            "w2": _w((lambda *s: torch.randn(*s, dtype=torch.bfloat16) * 3.2)(F, D) * (F ** -0.5)),
        }
    _B_in = _B_setup()

    return {
        "A_x": _A_in["x"],
        "A_wqkv": _A_in["wqkv"],
        "A_wo": _A_in["wo"],
        "B_x": _B_in["x"],
        "B_w1": _B_in["w1"],
        "B_w2": _B_in["w2"],
    }

def reference(A_x, A_wqkv, A_wo, B_x, B_w1, B_w2):
    def _A_ref(x, wqkv, wo):
        B, S, D = x.shape
        H = 32; Dh = D // H
        W, dil = 8, 2
        qkv = (lambda x, *d: x.permute(*d))((x @ wqkv).reshape(B, S, 3, H, Dh), 2, 0, 3, 1, 4)
        q, k, v = qkv[0], qkv[1], qkv[2]
        scale = Dh ** -0.5
        pos = torch.arange(S)
        off = torch.arange(W) * dil
        idx = pos[:, None] - off[None, :]
        mask = idx >= 0
        idx_c = torch.where(mask, idx, 0).reshape(-1)
        kg = k[:, :, idx_c, :].reshape(B, H, S, W, Dh)
        vg = v[:, :, idx_c, :].reshape(B, H, S, W, Dh)
        logits = torch.einsum("bhsd,bhswd->bhsw", q, kg) * scale
        logits = torch.where(mask[None, None, :, :], logits, -1e9)
        attn = _softmax(logits, axis=-1)
        o = torch.einsum("bhsw,bhswd->bhsd", attn, vg)
        return (lambda x, *d: x.permute(*d))(o, 0, 2, 1, 3).reshape(B, S, D) @ wo

    def _B_ref(x, w1, w2):
        h = torch.einsum("bsd,df->bsf", x, w1)
        h = _silu(h)
        out = torch.einsum("bsf,fd->bsd", h, w2)
        return out

    x = A_x
    xn = _layernorm(x, axis=-1)
    s = _A_ref(xn, A_wqkv, A_wo)
    g = _silu(_B_ref(xn, B_w1, B_w2))
    return x + s * g
```

```python
class Asm:
    def __init__(self):
        self.lines = []
    def __call__(self, s, *a):
        self.lines.append("    " + (s % a if a else s))
    def label(self, s):
        self.lines.append(s + ":")
    def raw(self, s):
        self.lines.append(s)
    def comment(self, s):
        self.lines.append("    ; " + s)
    def nop(self, n):
        while n > 0:
            k = min(n, 16)
            self("s_nop %d", k - 1)
            n -= k
    def text(self):
        return "\n".join(self.lines) + "\n"

def vr(b, n=1):
    return "v%d" % b if n == 1 else "v[%d:%d]" % (b, b + n - 1)
def ar(b, n=1):
    return "a%d" % b if n == 1 else "a[%d:%d]" % (b, b + n - 1)
def sr(b, n=1):
    return "s%d" % b if n == 1 else "s[%d:%d]" % (b, b + n - 1)

def srd(A, d, base_lo, base_hi, nbytes, off=0):
    if off:
        A("s_add_u32 s%d, s%d, 0x%x", d, base_lo, off)
        A("s_addc_u32 s%d, s%d, 0", d + 1, base_hi)
        A("s_and_b32 s%d, s%d, 0xffff", d + 1, d + 1)
    else:
        A("s_mov_b32 s%d, s%d", d, base_lo)
        A("s_and_b32 s%d, s%d, 0xffff", d + 1, base_hi)
    A("s_mov_b32 s%d, 0x%x", d + 2, nbytes)
    A("s_mov_b32 s%d, 0x00020000", d + 3)

def kdesc(name, vgpr, sgpr, accum):
    return f""".section .rodata,"a"
.p2align 6
.amdhsa_kernel {name}
  .amdhsa_next_free_vgpr {vgpr}
  .amdhsa_next_free_sgpr {sgpr}
  .amdhsa_accum_offset {accum}
  .amdhsa_group_segment_fixed_size 0
  .amdhsa_kernarg_size 72
  .amdhsa_user_sgpr_count 2
  .amdhsa_user_sgpr_kernarg_segment_ptr 1
  .amdhsa_system_sgpr_workgroup_id_x 1
.end_amdhsa_kernel
"""

def khead(name):
    return f""".text
.globl {name}
.p2align 8
.type {name},@function
{name}:
"""

WS_XN = 0
XN_BYTES = 128 * 20 * 1024
WS_ACT = 0x400000
ACT_BYTES = 32 * 74 * 4096
WS_WF = 0x1000000
WF_BYTES = 8 * 74 * 5120
```

```python
from core import *

def gen_k0(name):
    A = Asm()
    A("s_cmp_ge_u32 s2, 128")
    A("s_cbranch_scc1 L_k0_end")
    A("s_load_dwordx2 s[4:5], s[0:1], 0")
    A("s_load_dwordx2 s[6:7], s[0:1], 64")
    A("v_lshrrev_b32 v1, 6, v0")
    A("v_and_b32 v2, 63, v0")
    A("v_and_b32 v3, 15, v2")
    A("v_lshrrev_b32 v4, 4, v2")
    A("s_lshl_b32 s3, s2, 4")
    A("v_add_u32 v5, s3, v3")
    A("s_movk_i32 s8, 1280")
    A("v_mul_lo_u32 v5, v5, s8")
    A("v_lshlrev_b32 v6, 7, v1")
    A("v_add_u32 v5, v5, v6")
    A("v_lshrrev_b32 v6, 1, v4")
    A("v_lshlrev_b32 v6, 5, v6")
    A("v_add_u32 v5, v5, v6")
    A("v_and_b32 v6, 1, v4")
    A("v_lshlrev_b32 v6, 3, v6")
    A("v_add_u32 v5, v5, v6")
    A("s_mul_i32 s9, s2, 20480")
    A("v_lshlrev_b32 v7, 11, v1")
    A("v_lshlrev_b32 v6, 4, v2")
    A("v_add_u32 v7, v7, v6")
    A("v_add_u32 v7, s9, v7")
    A("v_mul_u32_u24 v8, 96, v3")
    A("v_lshlrev_b32 v6, 3, v1")
    A("v_add_u32 v9, v8, v6")
    A("s_waitcnt lgkmcnt(0)")
    srd(A, 12, 4, 5, 2048 * 1280)
    srd(A, 16, 6, 7, XN_BYTES, WS_XN)
    A("buffer_load_dwordx2 v[10:11], v5, s[12:15], 0 offen")
    A("buffer_load_dwordx2 v[12:13], v5, s[12:15], 0 offen offset:16")
    A("buffer_load_dwordx2 v[14:15], v5, s[12:15], 0 offen offset:64")
    A("buffer_load_dwordx2 v[16:17], v5, s[12:15], 0 offen offset:80")
    A("s_waitcnt vmcnt(0)")
    for i in range(8):
        A("v_lshlrev_b32 v%d, 16, v%d", 20 + 2 * i, 10 + i)
        A("v_and_b32 v%d, 0xffff0000, v%d", 21 + 2 * i, 10 + i)
    A("v_add_f32 v40, v20, v21")
    A("v_mul_f32 v41, v20, v20")
    A("v_fmac_f32 v41, v21, v21")
    for i in range(2, 16):
        A("v_add_f32 v40, v40, v%d", 20 + i)
        A("v_fmac_f32 v41, v%d, v%d", 20 + i, 20 + i)
    for r in (40, 41):
        A("v_mov_b32 v42, v%d", r)
        A.nop(2)
        A("v_permlane16_swap_b32 v%d, v42", r)
        A.nop(2)
        A("v_add_f32 v%d, v%d, v42", r, r)
        A("v_mov_b32 v42, v%d", r)
        A.nop(2)
        A("v_permlane32_swap_b32 v%d, v42", r)
        A.nop(2)
        A("v_add_f32 v%d, v%d, v42", r, r)
    A("ds_write_b64 v9, v[40:41]")
    A("s_waitcnt lgkmcnt(0)")
    A("s_barrier")
    for i in range(5):
        A("ds_read_b128 v[%d:%d], v8 offset:%d", 44 + 4 * i, 47 + 4 * i, 16 * i)
    A("s_waitcnt lgkmcnt(0)")
    A("v_add_f32 v40, v44, v46")
    A("v_add_f32 v41, v45, v47")
    for i in range(2, 10):
        A("v_add_f32 v40, v40, v%d", 44 + 2 * i)
        A("v_add_f32 v41, v41, v%d", 45 + 2 * i)
    A("s_mov_b32 s20, 0x3acccccd")
    A("v_mul_f32 v40, s20, v40")
    A("v_mul_f32 v41, s20, v41")
    A("v_fma_f32 v41, -v40, v40, v41")
    A("v_max_f32 v41, 0, v41")
    A("v_cvt_pk_bf16_f32 v40, 0, v40")
    A("v_cvt_pk_bf16_f32 v41, 0, v41")
    A("s_mov_b32 s21, 0x3727c5ac")
    A("v_add_f32 v41, s21, v41")
    A("v_cvt_pk_bf16_f32 v41, 0, v41")
    A("v_sqrt_f32 v41, v41")
    A("s_nop 0")
    A("v_cvt_pk_bf16_f32 v41, 0, v41")
    A("v_rcp_f32 v42, v41")
    A("s_nop 0")
    A("v_fma_f32 v43, -v41, v42, 2.0")
    A("v_mul_f32 v42, v42, v43")
    for i in range(16):
        A("v_sub_f32 v%d, v%d, v40", 20 + i, 20 + i)
        A("v_cvt_pk_bf16_f32 v%d, 0, v%d", 20 + i, 20 + i)
        A("v_mul_f32 v%d, v%d, v42", 20 + i, 20 + i)
    for i in range(8):
        A("v_cvt_pk_bf16_f32 v%d, v%d, v%d", 10 + i, 20 + 2 * i, 21 + 2 * i)
    A("buffer_store_dwordx4 v[10:13], v7, s[16:19], 0 offen")
    A("buffer_store_dwordx4 v[14:17], v7, s[16:19], 0 offen offset:1024")
    A.label("L_k0_end")
    A("s_endpgm")
    return khead(name) + A.text() + kdesc(name, 64, 32, 64)
```

```python
from core import *

R = 9
SLOT = 16384
NKS = 20
AHEAD = 6
NB = 8

S_W = 8
S_XN = 12
S_ACT = 16
S_WAVE = 20
S_LDSW = 21
S_WK = 22
S_X0 = 23
S_X1 = 24
S_XH = 25
S_RB = 26
S_CG = 27
S_TMP = 28
S_TMP2 = 29
S_M = 30
V_TID = 0
V_LANE = 1
V_L16 = 2
V_DMA = 4
V_TR = 8
V_TRH = 32
V_T0 = 44
V_ACC = 64
A_X = 0
A_WF = 108

def common_setup(A, typ):
    A("v_and_b32 v%d, 63, v%d", V_LANE, V_TID)
    A("v_lshlrev_b32 v%d, 4, v%d", V_L16, V_LANE)
    A("s_lshl_b32 s%d, s%d, 12", S_LDSW, S_WAVE)
    t0, t1, t2, t3, t4 = V_T0, V_T0 + 1, V_T0 + 2, V_T0 + 3, V_T0 + 4
    pitch = 3840 if typ == 'Q' else 3456
    A("v_lshrrev_b32 v%d, 5, v%d", t0, V_LANE)
    A("v_and_b32 v%d, 31, v%d", t1, V_LANE)
    for i in range(4):
        A("v_add_u32 v%d, %d, v%d", t2, 2 * i, t0)
        A("v_lshlrev_b32 v%d, 1, v%d", t3, t2)
        A("v_xor_b32 v%d, v%d, v%d", t3, t3, t1)
        A("s_lshl_b32 s%d, s%d, 3", S_TMP, S_WAVE)
        A("v_add_u32 v%d, s%d, v%d", t2, S_TMP, t2)
        A("s_movk_i32 s%d, %d", S_TMP, pitch)
        A("v_mul_lo_u32 v%d, v%d, s%d", t2, t2, S_TMP)
        if typ == 'Q':
            A("v_min_u32 v%d, 29, v%d", t3, t3)
            A("v_mul_u32_u24 v%d, 26, v%d", t4, t3)
            A("v_lshrrev_b32 v%d, 8, v%d", t4, t4)
            A("v_mul_u32_u24 v%d, 1120, v%d", t4, t4)
            A("v_add_u32 v%d, v%d, v%d", t2, t2, t4)
            A("v_lshlrev_b32 v%d, 4, v%d", t3, t3)
            A("v_add_u32 v%d, v%d, v%d", t2, t2, t3)
            A("s_mul_i32 s%d, s%d, 160", S_TMP, S_CG)
            A("v_add_u32 v%d, s%d, v%d", V_DMA + i, S_TMP, t2)
        else:
            A("v_lshlrev_b32 v%d, 4, v%d", t3, t3)
            A("v_add_u32 v%d, v%d, v%d", t2, t2, t3)
            A("v_add_u32 v%d, s%d, v%d", V_DMA + i, S_CG, t2)
    A("v_lshrrev_b32 v%d, 4, v%d", t0, V_LANE)
    A("v_bfe_u32 v%d, v%d, 2, 2", t1, V_LANE)
    A("v_and_b32 v%d, 1, v%d", t2, t0)
    A("v_lshl_add_u32 v%d, v%d, 2, v%d", t2, t2, t1)
    A("v_lshrrev_b32 v%d, 1, v%d", t3, t0)
    A("v_lshl_add_u32 v%d, v%d, 4, v%d", t3, t3, t2)
    A("v_lshlrev_b32 v%d, 9, v%d", t3, t3)
    A("v_and_b32 v%d, 3, v%d", t4, V_LANE)
    A("v_lshl_add_u32 v%d, v%d, 3, v%d", t3, t4, t3)
    for j in range(8):
        A("v_xor_b32 v%d, %d, v%d", t4, j, t2)
        A("v_lshl_add_u32 v%d, v%d, 5, v%d", V_TR + j, t4, t3)
        A("v_add_u32 v%d, 0x%x, v%d", V_TR + 8 + j, 4 * SLOT, V_TR + j)
        A("v_add_u32 v%d, 0x%x, v%d", V_TR + 16 + j, 8 * SLOT, V_TR + j)
    if typ == 'Q':
        for sl in range(4):
            base = 5 if sl < 2 else 10
            A("s_lshl_b32 s%d, s%d, 1", S_TMP, S_WAVE)
            A("s_add_u32 s%d, s%d, %d", S_TMP, S_TMP, sl & 1)
            A("s_min_u32 s%d, s%d, %d", S_TMP, S_TMP, 3 + (sl & 1))
            A("s_add_u32 s%d, s%d, %d", S_TMP, S_TMP, base)
            A("s_and_b32 s%d, s%d, 7", S_TMP2, S_TMP)
            A("v_xor_b32 v%d, s%d, v%d", t4, S_TMP2, t2)
            A("v_lshl_add_u32 v%d, v%d, 5, v%d", t4, t4, t3)
            A("s_lshr_b32 s%d, s%d, 3", S_TMP2, S_TMP)
            A("s_lshl_b32 s%d, s%d, 8", S_TMP2, S_TMP2)
            A("v_add_u32 v%d, s%d, v%d", V_TRH + sl, S_TMP2, t4)
            A("v_add_u32 v%d, 0x%x, v%d", V_TRH + 4 + sl, 4 * SLOT, V_TRH + sl)
            A("v_add_u32 v%d, 0x%x, v%d", V_TRH + 8 + sl, 8 * SLOT, V_TRH + sl)

def issue_stage(A, typ, s):
    slot = s % R
    pitch = 3840 if typ == 'Q' else 3456
    for i in range(4):
        A("s_add_u32 m0, s%d, 0x%x", S_LDSW, slot * SLOT + i * 1024)
        A("s_nop 0")
        A("buffer_load_dwordx4 v%d, s[%d:%d], s%d offen lds", V_DMA + i, S_W, S_W + 3, S_WK)
    A("s_add_u32 s%d, s%d, %d", S_WK, S_WK, 32 * pitch)
    xb = A_X + slot * 12
    A("buffer_load_dwordx4 a[%d:%d], v%d, s[%d:%d], s%d offen", xb, xb + 3, V_L16, S_XN, S_XN + 3, S_X0)
    A("buffer_load_dwordx4 a[%d:%d], v%d, s[%d:%d], s%d offen", xb + 4, xb + 7, V_L16, S_XN, S_XN + 3, S_X1)
    A("s_add_u32 s%d, s%d, 1024", S_X0, S_X0)
    A("s_add_u32 s%d, s%d, 1024", S_X1, S_X1)
    if typ == 'Q':
        A("buffer_load_dwordx4 a[%d:%d], v%d, s[%d:%d], s%d offen", xb + 8, xb + 11, V_L16, S_XN, S_XN + 3, S_XH)
        A("s_add_u32 s%d, s%d, 1024", S_XH, S_XH)

def frag_list(typ):
    if typ == 'Q':
        return [('m', T) for T in range(15)] + [('h', sl) for sl in range(4)]
    return [('m', T) for T in range(16)]

def acc_main(typ, a, T):
    nt = 15 if typ == 'Q' else 16
    return V_ACC + (a * nt + T) * 4
def acc_halo(sl):
    return V_ACC + 120 + sl * 4

def emit_read(A, typ, s, f):
    kind, T = frag_list(typ)[f]
    nf = len(frag_list(typ))
    F = s * nf + f
    buf = A_WF + (F % NB) * 4
    slot = s % R
    st, sin = slot // 4, slot % 4
    for h in range(2):
        if kind == 'm':
            addr = V_TR + st * 8 + (T & 7)
            off = sin * SLOT + h * 4096 + (T >> 3) * 256
        else:
            addr = V_TRH + st * 4 + T
            off = sin * SLOT + h * 4096
        A("ds_read_b64_tr_b16 a[%d:%d], v%d offset:%d", buf + 2 * h, buf + 2 * h + 1, addr, off)

def emit_mfma(A, typ, s, f):
    kind, T = frag_list(typ)[f]
    nf = len(frag_list(typ))
    F = s * nf + f
    buf = A_WF + (F % NB) * 4
    xb = A_X + (s % R) * 12
    W = "a[%d:%d]" % (buf, buf + 3)
    if kind == 'm':
        for a in range(2):
            X = "a[%d:%d]" % (xb + 4 * a, xb + 4 * a + 3)
            acc = acc_main(typ, a, T)
            C = "v[%d:%d]" % (acc, acc + 3)
            Cin = C if s > 0 else "0"
            if typ == 'Q' and T >= 10:
                A("v_mfma_f32_16x16x32_bf16 %s, %s, %s, %s", C, X, W, Cin)
            else:
                A("v_mfma_f32_16x16x32_bf16 %s, %s, %s, %s", C, W, X, Cin)
    else:
        X = "a[%d:%d]" % (xb + 8, xb + 11)
        acc = acc_halo(T)
        C = "v[%d:%d]" % (acc, acc + 3)
        Cin = C if s > 0 else "0"
        if T >= 2:
            A("v_mfma_f32_16x16x32_bf16 %s, %s, %s, %s", C, X, W, Cin)
        else:
            A("v_mfma_f32_16x16x32_bf16 %s, %s, %s, %s", C, W, X, Cin)

def main_loop(A, typ):
    nf = len(frag_list(typ))
    nops = 7 if typ == 'Q' else 6
    for s in range(8):
        issue_stage(A, typ, s)
    A("s_waitcnt vmcnt(%d)", 7 * nops)
    A("s_barrier")
    total = NKS * nf
    for F in range(AHEAD):
        emit_read(A, typ, F // nf, F % nf)
    for F in range(total):
        s, f = F // nf, F % nf
        Fn = F + AHEAD
        if Fn < total:
            sn, fn = Fn // nf, Fn % nf
            if fn == 0:
                issued = min(sn + 6, NKS - 1)
                A("s_waitcnt vmcnt(%d)", (issued - sn) * nops)
                A("s_barrier")
                if sn + 7 < NKS:
                    issue_stage(A, typ, sn + 7)
            emit_read(A, typ, sn, fn)
            A("s_waitcnt lgkmcnt(%d)", 2 * AHEAD)
        else:
            A("s_waitcnt lgkmcnt(%d)", 2 * (total - 1 - F))
        emit_mfma(A, typ, s, f)

def silu_inplace(A, v, t):
    A("v_mul_f32 v%d, 0xbfb8aa3b, v%d", t, v)
    A("v_exp_f32 v%d, v%d", t, t)
    A("s_nop 0")
    A("v_add_f32 v%d, 1.0, v%d", t, t)
    A("v_rcp_f32 v%d, v%d", t, t)
    A("s_nop 0")
    A("v_mul_f32 v%d, v%d, v%d", v, v, t)

def h_epilogue(A):
    A.nop(16)
    t = V_T0
    for a in range(2):
        A("s_lshl_b32 s%d, s%d, 3", S_TMP, S_RB)
        A("s_lshl_b32 s%d, s%d, 1", S_TMP2, S_WAVE)
        A("s_add_u32 s%d, s%d, s%d", S_TMP, S_TMP, S_TMP2)
        A("s_add_u32 s%d, s%d, %d", S_TMP, S_TMP, a)
        A("s_lshr_b32 s%d, s%d, 2", S_TMP2, S_TMP)
        A("s_mul_i32 s%d, s%d, %d", S_TMP2, S_TMP2, 74 * 4096)
        A("s_and_b32 s%d, s%d, 3", S_TMP, S_TMP)
        A("s_lshl_b32 s%d, s%d, 10", S_TMP, S_TMP)
        A("s_add_u32 s%d, s%d, s%d", S_TMP, S_TMP, S_TMP2)
        A("s_lshl_b32 s%d, s%d, 6", S_TMP2, S_CG)
        A("s_add_u32 s%d, s%d, s%d", S_TMP, S_TMP, S_TMP2)
        A("s_add_u32 s%d, s%d, %d", S_TMP, S_TMP, 20 * 4096)
        for T2 in range(8):
            regs = []
            for half in range(2):
                acc = acc_main('H', a, 2 * T2 + half)
                for r in range(4):
                    A("v_cvt_pk_bf16_f32 v%d, 0, v%d", acc + r, acc + r)
                for r in range(4):
                    silu_inplace(A, acc + r, t + r)
                regs.append(acc)
            o = V_T0 + 8 + (T2 & 1) * 4
            A("v_cvt_pk_bf16_f32 v%d, v%d, v%d", o, regs[0], regs[0] + 1)
            A("v_cvt_pk_bf16_f32 v%d, v%d, v%d", o + 1, regs[0] + 2, regs[0] + 3)
            A("v_cvt_pk_bf16_f32 v%d, v%d, v%d", o + 2, regs[1], regs[1] + 1)
            A("v_cvt_pk_bf16_f32 v%d, v%d, v%d", o + 3, regs[1] + 2, regs[1] + 3)
            A("buffer_store_dwordx4 v[%d:%d], v%d, s[%d:%d], s%d offen", o, o + 3, V_L16, S_ACT, S_ACT + 3, S_TMP)
            A("s_add_u32 s%d, s%d, 4096", S_TMP, S_TMP)

def interleave(A, lists):
    n = max(len(l) for l in lists)
    for i in range(n):
        for l in lists:
            if i < len(l):
                A(l[i])

QP = 200
VP = 220
KP = 8
EX0 = 2 * SLOT

def q_epilogue(A):
    A.nop(16)
    for a in range(2):
        for T in range(5):
            acc = acc_main('Q', a, T)
            A("v_cvt_pk_bf16_f32 v%d, v%d, v%d", QP + a * 10 + 2 * T, acc, acc + 1)
            A("v_cvt_pk_bf16_f32 v%d, v%d, v%d", QP + a * 10 + 2 * T + 1, acc + 2, acc + 3)
            acc = acc_main('Q', a, 5 + T)
            A("v_cvt_pk_bf16_f32 v%d, v%d, v%d", KP + (a + 1) * 10 + 2 * T, acc, acc + 1)
            A("v_cvt_pk_bf16_f32 v%d, v%d, v%d", KP + (a + 1) * 10 + 2 * T + 1, acc + 2, acc + 3)
            acc = acc_main('Q', a, 10 + T)
            A("v_cvt_pk_bf16_f32 v%d, v%d, v%d", VP + T * 6 + (a + 1) * 2, acc, acc + 1)
            A("v_cvt_pk_bf16_f32 v%d, v%d, v%d", VP + T * 6 + (a + 1) * 2 + 1, acc + 2, acc + 3)
    for sl in range(4):
        acc = acc_halo(sl)
        A("v_cvt_pk_bf16_f32 v%d, v%d, v%d", V_T0 + 2 * sl, acc, acc + 1)
        A("v_cvt_pk_bf16_f32 v%d, v%d, v%d", V_T0 + 2 * sl + 1, acc + 2, acc + 3)
    ad = V_T0 + 8
    ad2 = V_T0 + 9
    A("v_lshlrev_b32 v%d, 3, v%d", ad2, V_LANE)
    A("v_add_u32 v%d, 0x%x, v%d", ad2, EX0, ad2)
    A("s_mul_i32 s%d, s%d, 5120", S_TMP, S_WAVE)
    A("v_add_u32 v%d, s%d, v%d", V_T0 + 10, S_TMP, ad2)
    A("v_add_u32 v%d, 5120, v%d", ad, V_T0 + 10)
    for T in range(5):
        A("ds_write_b64 v%d, v[%d:%d] offset:%d", ad, KP + 20 + 2 * T, KP + 20 + 2 * T + 1, T * 512)
        A("ds_write_b64 v%d, v[%d:%d] offset:%d", ad, VP + T * 6 + 4, VP + T * 6 + 5, (5 + T) * 512)
    for sl in range(4):
        A("s_lshl_b32 s%d, s%d, 1", S_TMP, S_WAVE)
        A("s_add_u32 s%d, s%d, %d", S_TMP, S_TMP, sl & 1)
        A("s_min_u32 s%d, s%d, %d", S_TMP, S_TMP, 3 + (sl & 1))
        A("s_add_u32 s%d, s%d, %d", S_TMP, S_TMP, 0 if sl < 2 else 5)
        A("s_lshl_b32 s%d, s%d, 9", S_TMP, S_TMP)
        A("v_add_u32 v%d, s%d, v%d", V_T0 + 11, S_TMP, ad2)
        A("ds_write_b64 v%d, v[%d:%d]", V_T0 + 11, V_T0 + 2 * sl, V_T0 + 2 * sl + 1)
    A("s_waitcnt lgkmcnt(0)")
    A("s_barrier")
    for T in range(5):
        A("ds_read_b64 v[%d:%d], v%d offset:%d", KP + 2 * T, KP + 2 * T + 1, V_T0 + 10, T * 512)
        A("ds_read_b64 v[%d:%d], v%d offset:%d", VP + T * 6, VP + T * 6 + 1, V_T0 + 10, (5 + T) * 512)
    BP, BC, BP0 = 64, 68, 72
    j, g4, t = V_T0, V_T0 + 1, V_T0 + 2
    A("v_and_b32 v%d, 15, v%d", j, V_LANE)
    A("v_lshrrev_b32 v%d, 4, v%d", g4, V_LANE)
    A("v_lshlrev_b32 v%d, 2, v%d", g4, g4)
    A("v_sub_u32 v%d, v%d, v%d", j, j, g4)
    A("v_mov_b32 v%d, 0xf149f2ca", V_T0 + 3)
    for r in range(4):
        A("v_subrev_u32 v%d, %d, v%d", t, r, j)
        A("v_and_b32 v%d, 0x80000001, v%d", t, t)
        A("v_cmp_eq_u32 vcc, 0, v%d", t)
        A("s_nop 1")
        A("v_cndmask_b32 v%d, v%d, 0, vcc", BC + r, V_T0 + 3)
        A("v_add_u32 v%d, %d, v%d", t, 16 - r, j)
        A("v_and_b32 v%d, 1, v%d", V_T0 + 4, t)
        A("v_cmp_eq_u32 vcc, 0, v%d", V_T0 + 4)
        A("v_cmp_ge_i32 s[30:31], 14, v%d", t)
        A("s_nop 1")
        A("s_and_b64 vcc, vcc, s[30:31]")
        A("s_nop 1")
        A("v_cndmask_b32 v%d, v%d, 0, vcc", BP + r, V_T0 + 3)
    A("s_or_b32 s%d, s%d, s%d", S_TMP, S_RB, S_WAVE)
    A("s_cmp_eq_u32 s%d, 0", S_TMP)
    A("s_cselect_b64 vcc, -1, 0")
    A("s_nop 1")
    for r in range(4):
        A("v_cndmask_b32 v%d, v%d, v%d, vcc", BP0 + r, BP + r, V_T0 + 3)
    A("s_mov_b32 s32, 0xaaaaaaaa"); A("s_mov_b32 s33, 0xaaaaaaaa")
    A("s_mov_b32 s34, 0xffff0000"); A("s_mov_b32 s35, 0xffffffff")
    A("s_mov_b32 s36, 0"); A("s_mov_b32 s37, 0xffffffff")
    A("s_mov_b32 s38, 0"); A("s_mov_b32 s39, 0xffff0000")
    A("s_mov_b32 s40, 0x0000ffff"); A("s_mov_b32 s41, 0")
    A("s_mov_b32 s42, 0xffffffff"); A("s_mov_b32 s43, 0")
    A("s_mov_b32 s44, 0xffffffff"); A("s_mov_b32 s45, 0x0000ffff")
    A("s_mov_b32 s46, 0x3e64f92e")
    A("s_mov_b32 s47, 0x3fb8aa3b")
    PM = V_T0 + 5
    A("v_mov_b32 v%d, 0x0000ffff", PM)
    A("v_mov_b32 v%d, 0xffff0000", V_T0 + 6)
    A("v_cndmask_b32 v%d, v%d, v%d, s[32:33]", PM, PM, V_T0 + 6)
    QF, SRr = 76, 108
    ge = {1: "s[34:35]", 2: "s[36:37]", 3: "s[38:39]"}
    le = {0: "s[40:41]", 1: "s[42:43]", 2: "s[44:45]"}
    for a in range(2):
        for hh in range(4):
            u = a * 4 + hh
            qa = QP + a * 10 + 2 * hh
            for d in range(2):
                if hh == 0:
                    A("v_mov_b32 v%d, v%d", QF + u * 4 + d, qa + d)
                else:
                    A("v_cndmask_b32 v%d, 0, v%d, %s", QF + u * 4 + d, qa + d, ge[hh])
                if hh == 3:
                    A("v_mov_b32 v%d, v%d", QF + u * 4 + 2 + d, qa + 2 + d)
                else:
                    A("v_cndmask_b32 v%d, 0, v%d, %s", QF + u * 4 + 2 + d, qa + 2 + d, le[hh])
    A("s_waitcnt lgkmcnt(0)")
    A.nop(2)
    for a in range(2):
        for hh in range(4):
            u = a * 4 + hh
            q = "v[%d:%d]" % (QF + u * 4, QF + u * 4 + 3)
            kp = KP + a * 10 + 2 * hh
            kc = KP + (a + 1) * 10 + 2 * hh
            bp = BP0 if a == 0 else BP
            A("v_mfma_f32_16x16x32_bf16 v[%d:%d], v[%d:%d], %s, v[%d:%d]", SRr + u * 8, SRr + u * 8 + 3, kp, kp + 3, q, bp, bp + 3)
            A("v_mfma_f32_16x16x32_bf16 v[%d:%d], v[%d:%d], %s, v[%d:%d]", SRr + u * 8 + 4, SRr + u * 8 + 7, kc, kc + 3, q, BC, BC + 3)
    A.nop(12)
    PF = QF
    lists = []
    for u in range(8):
        S = SRr + u * 8
        c = [S, S + 2, S + 4, S + 6]
        m, t1 = S + 1, S + 3
        e = []
        L = []
        for i in range(4):
            L.append("v_cndmask_b32 v%d, v%d, v%d, s[32:33]" % (c[i], c[i], c[i] + 1))
        for i in range(4):
            L.append("v_cvt_pk_bf16_f32 v%d, 0, v%d" % (c[i], c[i]))
        for i in range(4):
            L.append("v_mul_f32 v%d, s46, v%d" % (c[i], c[i]))
        for i in range(4):
            L.append("v_cvt_pk_bf16_f32 v%d, 0, v%d" % (c[i], c[i]))
        L.append("v_max3_f32 v%d, v%d, v%d, v%d" % (m, c[0], c[1], c[2]))
        L.append("v_max_f32 v%d, v%d, v%d" % (m, m, c[3]))
        for sw in ("v_permlane16_swap_b32", "v_permlane32_swap_b32"):
            L.append("v_mov_b32 v%d, v%d" % (t1, m))
            L.append("s_nop 0")
            L.append("%s v%d, v%d" % (sw, m, t1))
            L.append("s_nop 0")
            L.append("v_max_f32 v%d, v%d, v%d" % (m, m, t1))
        for i in range(4):
            L.append("v_sub_f32 v%d, v%d, v%d" % (c[i], c[i], m))
        for i in range(4):
            L.append("v_mul_f32 v%d, s47, v%d" % (c[i], c[i]))
        for i in range(4):
            L.append("v_exp_f32 v%d, v%d" % (c[i], c[i]))
        L.append("v_add_f32 v%d, v%d, v%d" % (m, c[0], c[1]))
        L.append("v_add_f32 v%d, v%d, v%d" % (t1, c[2], c[3]))
        L.append("v_add_f32 v%d, v%d, v%d" % (m, m, t1))
        for sw in ("v_permlane16_swap_b32", "v_permlane32_swap_b32"):
            L.append("v_mov_b32 v%d, v%d" % (t1, m))
            L.append("s_nop 0")
            L.append("%s v%d, v%d" % (sw, m, t1))
            L.append("s_nop 0")
            L.append("v_add_f32 v%d, v%d, v%d" % (m, m, t1))
        L.append("v_rcp_f32 v%d, v%d" % (m, m))
        L.append("s_nop 0")
        for i in range(4):
            L.append("v_mul_f32 v%d, v%d, v%d" % (c[i], c[i], m))
        for i in range(4):
            L.append("v_cvt_pk_bf16_f32 v%d, v%d, v%d" % (c[i], c[i], c[i]))
        for i in range(4):
            L.append("v_and_b32 v%d, v%d, v%d" % (PF + u * 4 + i, c[i], PM))
        lists.append(L)
    interleave(A, lists[0:4])
    interleave(A, lists[4:8])
    A.nop(2)
    for a in range(2):
        for hh in range(4):
            u = a * 4 + hh
            p = "v[%d:%d]" % (PF + u * 4, PF + u * 4 + 3)
            va = VP + hh * 6 + 2 * a
            vb = VP + (hh + 1) * 6 + 2 * a
            A("v_mfma_f32_16x16x32_bf16 v[%d:%d], v[%d:%d], %s, 0", SRr + u * 8, SRr + u * 8 + 3, va, va + 3, p)
            A("v_mfma_f32_16x16x32_bf16 v[%d:%d], v[%d:%d], %s, 0", SRr + u * 8 + 4, SRr + u * 8 + 7, vb, vb + 3, p)
    A.nop(12)
    for u in range(8):
        for hb in range(2):
            o = SRr + u * 8 + 4 * hb
            A("v_cvt_pk_bf16_f32 v%d, v%d, v%d", o, o, o + 1)
            A("v_cvt_pk_bf16_f32 v%d, v%d, v%d", o + 1, o + 2, o + 3)
    for a in range(2):
        A("s_lshl_b32 s%d, s%d, 3", S_TMP, S_RB)
        A("s_lshl_b32 s%d, s%d, 1", S_TMP2, S_WAVE)
        A("s_add_u32 s%d, s%d, s%d", S_TMP, S_TMP, S_TMP2)
        A("s_add_u32 s%d, s%d, %d", S_TMP, S_TMP, a)
        A("s_lshr_b32 s%d, s%d, 2", S_TMP2, S_TMP)
        A("s_mul_i32 s%d, s%d, %d", S_TMP2, S_TMP2, 74 * 4096)
        A("s_and_b32 s%d, s%d, 3", S_TMP, S_TMP)
        A("s_lshl_b32 s%d, s%d, 10", S_TMP, S_TMP)
        A("s_add_u32 s48, s%d, s%d", S_TMP, S_TMP2)
        for T in range(5):
            if T == 0:
                src = SRr + (a * 4 + 0) * 8
            elif T == 4:
                src = SRr + (a * 4 + 3) * 8 + 4
            else:
                lo = SRr + (a * 4 + T - 1) * 8 + 4
                hi = SRr + (a * 4 + T) * 8
                for d in range(2):
                    A("v_cndmask_b32 v%d, v%d, v%d, %s", hi + d, hi + d, lo + d, le[T - 1])
                src = hi
            A("s_mul_i32 s%d, s%d, 5", S_TMP, S_CG)
            A("s_add_u32 s%d, s%d, %d", S_TMP, S_TMP, T)
            A("s_and_b32 s%d, s%d, 1", S_TMP2, S_TMP)
            A("s_lshl_b32 s%d, s%d, 3", S_TMP2, S_TMP2)
            A("s_lshr_b32 s%d, s%d, 1", S_TMP, S_TMP)
            A("s_lshl_b32 s%d, s%d, 12", S_TMP, S_TMP)
            A("s_add_u32 s%d, s%d, s%d", S_TMP, S_TMP, S_TMP2)
            A("s_add_u32 s%d, s%d, s48", S_TMP, S_TMP)
            A("buffer_store_dwordx2 v[%d:%d], v%d, s[%d:%d], s%d offen", src, src + 1, V_L16, S_ACT, S_ACT + 3, S_TMP)

def r_type(A):
    VD = 8
    t0, t1, t2 = V_T0, V_T0 + 1, V_T0 + 2
    A("v_and_b32 v%d, 63, v%d", V_LANE, V_TID)
    A("v_lshlrev_b32 v%d, 4, v%d", V_L16, V_LANE)
    A("s_mul_i32 s%d, s%d, 640", S_TMP, S_WAVE)
    for i in range(10):
        A("v_add_u32 v%d, s%d, v%d", t0, S_TMP, V_LANE)
        A("v_add_u32 v%d, %d, v%d", t0, 64 * i, t0)
        A("v_mul_u32_u24 v%d, 3277, v%d", t1, t0)
        A("v_lshrrev_b32 v%d, 18, v%d", t1, t1)
        A("v_mul_u32_u24 v%d, 80, v%d", t2, t1)
        A("v_sub_u32 v%d, v%d, v%d", t0, t0, t2)
        A("v_and_b32 v%d, 7, v%d", t2, t1)
        A("v_lshlrev_b32 v%d, 1, v%d", t2, t2)
        A("v_xor_b32 v%d, v%d, v%d", t0, t0, t2)
        A("v_mul_u32_u24 v%d, 1280, v%d", t1, t1)
        A("v_lshl_add_u32 v%d, v%d, 4, v%d", VD + i, t0, t1)
    g, r_, r7, b = V_T0, V_T0 + 1, V_T0 + 2, V_T0 + 3
    A("v_lshrrev_b32 v%d, 4, v%d", g, V_LANE)
    A("v_bfe_u32 v%d, v%d, 2, 2", r_, V_LANE)
    A("v_and_b32 v%d, 1, v%d", r7, g)
    A("v_lshl_add_u32 v%d, v%d, 2, v%d", r7, r7, r_)
    A("v_lshl_add_u32 v%d, v%d, 2, v%d", b, g, r_)
    A("v_mul_u32_u24 v%d, 1280, v%d", b, b)
    A("v_and_b32 v%d, 3, v%d", V_T0 + 4, V_LANE)
    A("v_lshl_add_u32 v%d, v%d, 3, v%d", b, V_T0 + 4, b)
    VT = 20
    for i in range(10):
        A("s_mul_i32 s%d, s%d, 10", S_TMP, S_WAVE)
        A("s_add_u32 s%d, s%d, %d", S_TMP, S_TMP, i)
        A("s_and_b32 s%d, s%d, 7", S_TMP2, S_TMP)
        A("v_xor_b32 v%d, s%d, v%d", V_T0 + 4, S_TMP2, r7)
        A("v_lshl_add_u32 v%d, v%d, 5, v%d", V_T0 + 4, V_T0 + 4, b)
        A("s_lshr_b32 s%d, s%d, 3", S_TMP2, S_TMP)
        A("s_lshl_b32 s%d, s%d, 8", S_TMP2, S_TMP2)
        A("v_add_u32 v%d, s%d, v%d", VT + i, S_TMP2, V_T0 + 4)
    A("s_mul_i32 s%d, s%d, 10240", S_LDSW, S_WAVE)
    A("s_mov_b32 s50, s%d", S_CG)
    A("s_mov_b32 s62, 0x%x", 640 * 1280)
    A("s_mov_b32 s63, 0x%x", 1728 * 1280)
    A.label("L_r_loop")
    A("s_cmp_lt_u32 s50, 20")
    A("s_cselect_b32 s8, s4, s6")
    A("s_cselect_b32 s9, s5, s7")
    A("s_cselect_b32 s10, s62, s63")
    A("s_cselect_b32 s52, 0, 20")
    A("s_and_b32 s9, s9, 0xffff")
    A("s_mov_b32 s11, 0x00020000")
    A("s_sub_u32 s51, s50, s52")
    A("s_mul_i32 s51, s51, %d", 32 * 1280)
    for i in range(10):
        A("s_add_u32 m0, s%d, %d", S_LDSW, i * 1024)
        A("s_nop 0")
        A("buffer_load_dwordx4 v%d, s[8:11], s51 offen lds", VD + i)
    A("s_waitcnt vmcnt(0)")
    A("s_barrier")
    for i in range(10):
        A("ds_read_b64_tr_b16 v[%d:%d], v%d", 64 + 4 * i, 65 + 4 * i, VT + i)
        A("ds_read_b64_tr_b16 v[%d:%d], v%d offset:20480", 66 + 4 * i, 67 + 4 * i, VT + i)
    A("s_waitcnt lgkmcnt(0)")
    for i in range(10):
        A("s_lshl_b32 s%d, s%d, 1", S_TMP, S_WAVE)
        A("s_add_u32 s%d, s%d, %d", S_TMP, S_TMP, i // 5)
        A("s_mul_i32 s%d, s%d, 74", S_TMP, S_TMP)
        A("s_add_u32 s%d, s%d, s50", S_TMP, S_TMP)
        A("s_mul_i32 s%d, s%d, 5120", S_TMP, S_TMP)
        A("s_add_u32 s%d, s%d, %d", S_TMP, S_TMP, (i % 5) * 1024)
        A("buffer_store_dwordx4 v[%d:%d], v%d, s[%d:%d], s%d offen", 64 + 4 * i, 67 + 4 * i, V_L16, S_ACT, S_ACT + 3, S_TMP)
    A("s_waitcnt vmcnt(0)")
    A("s_barrier")
    A("s_add_u32 s50, s50, 16")
    A("s_cmp_lt_u32 s50, 74")
    A("s_cbranch_scc1 L_r_loop")

def gen_k1(name):
    A = Asm()
    A("s_cmp_ge_u32 s2, 256")
    A("s_cbranch_scc1 L_k1_end")
    A("s_load_dwordx4 s[52:55], s[0:1], 8")
    A("s_load_dwordx4 s[56:59], s[0:1], 32")
    A("s_load_dwordx2 s[60:61], s[0:1], 64")
    A("v_lshrrev_b32 v1, 6, v0")
    A("s_nop 0")
    A("v_readfirstlane_b32 s%d, v1", S_WAVE)
    A("s_and_b32 s3, s2, 7")
    A("s_lshr_b32 s4, s2, 3")
    A("s_and_b32 s5, s3, 1")
    A("s_lshr_b32 s6, s3, 1")
    A("s_waitcnt lgkmcnt(0)")
    srd(A, S_XN, 60, 61, XN_BYTES, WS_XN)
    A("s_cmp_ge_u32 s4, 30")
    A("s_cbranch_scc1 L_k1_r")
    srd(A, S_ACT, 60, 61, ACT_BYTES, WS_ACT)
    A("s_cmp_ge_u32 s4, 16")
    A("s_cbranch_scc1 L_k1_h")
    A("s_lshr_b32 s7, s4, 3")
    A("s_lshl_b32 s%d, s6, 1", S_CG)
    A("s_add_u32 s%d, s%d, s7", S_CG, S_CG)
    A("s_and_b32 s7, s4, 7")
    A("s_lshl_b32 s%d, s5, 3", S_RB)
    A("s_add_u32 s%d, s%d, s7", S_RB, S_RB)
    srd(A, S_W, 52, 53, 640 * 3840)
    A("s_mov_b32 s%d, 0", S_WK)
    A("s_lshl_b32 s7, s%d, 3", S_RB)
    A("s_lshl_b32 s%d, s%d, 1", S_TMP, S_WAVE)
    A("s_add_u32 s%d, s7, s%d", S_TMP, S_TMP)
    A("s_mul_i32 s%d, s%d, 20480", S_X0, S_TMP)
    A("s_add_u32 s%d, s%d, 20480", S_X1, S_X0)
    A("s_max_u32 s7, s7, 1")
    A("s_sub_u32 s7, s7, 1")
    A("s_mul_i32 s%d, s7, 20480", S_XH)
    common_setup(A, 'Q')
    main_loop(A, 'Q')
    q_epilogue(A)
    A("s_endpgm")
    A.label("L_k1_h")
    A("s_mul_i32 s7, s6, 14")
    A("s_add_u32 s7, s7, s4")
    A("s_sub_u32 s7, s7, 16")
    A("s_lshr_b32 s%d, s7, 3", S_CG)
    A("s_and_b32 s7, s7, 7")
    A("s_lshl_b32 s%d, s5, 3", S_RB)
    A("s_add_u32 s%d, s%d, s7", S_RB, S_RB)
    A("s_lshl_b32 s%d, s%d, 9", S_CG, S_CG)
    A("s_min_u32 s%d, s%d, 2944", S_CG, S_CG)
    srd(A, S_W, 56, 57, 640 * 3456)
    A("s_mov_b32 s%d, 0", S_WK)
    A("s_lshl_b32 s7, s%d, 3", S_RB)
    A("s_lshl_b32 s%d, s%d, 1", S_TMP, S_WAVE)
    A("s_add_u32 s%d, s7, s%d", S_TMP, S_TMP)
    A("s_mul_i32 s%d, s%d, 20480", S_X0, S_TMP)
    A("s_add_u32 s%d, s%d, 20480", S_X1, S_X0)
    common_setup(A, 'H')
    main_loop(A, 'H')
    h_epilogue(A)
    A("s_endpgm")
    A.label("L_k1_r")
    A("s_lshl_b32 s%d, s3, 1", S_CG)
    A("s_add_u32 s%d, s%d, s4", S_CG, S_CG)
    A("s_sub_u32 s%d, s%d, 30", S_CG, S_CG)
    srd(A, S_ACT, 60, 61, WF_BYTES, WS_WF)
    A("s_mov_b32 s4, s54"); A("s_mov_b32 s5, s55")
    A("s_mov_b32 s6, s58"); A("s_mov_b32 s7, s59")
    r_type(A)
    A.label("L_k1_end")
    A("s_endpgm")
    return khead(name) + A.text() + kdesc(name, 512, 72, 256)
```

```python
from core import *

D = 6

def gen_k2(name):
    A = Asm()
    A("s_cmp_ge_u32 s2, 256")
    A("s_cbranch_scc1 L_k2_end")
    A("s_load_dwordx2 s[4:5], s[0:1], 0")
    A("s_load_dwordx2 s[6:7], s[0:1], 48")
    A("s_load_dwordx2 s[60:61], s[0:1], 64")
    A("v_lshrrev_b32 v1, 6, v0")
    A("s_nop 0")
    A("v_readfirstlane_b32 s20, v1")
    A("v_and_b32 v1, 63, v0")
    A("v_lshlrev_b32 v2, 4, v1")
    A("v_add_u32 v3, 4096, v2")
    A("s_and_b32 s3, s2, 7")
    A("s_lshr_b32 s21, s2, 3")
    A("s_lshr_b32 s22, s3, 1")
    A("s_lshl_b32 s22, s22, 3")
    A("s_and_b32 s23, s21, 7")
    A("s_add_u32 s22, s22, s23")
    A("s_and_b32 s23, s3, 1")
    A("s_lshl_b32 s23, s23, 2")
    A("s_lshr_b32 s24, s21, 3")
    A("s_add_u32 s23, s23, s24")
    A("s_mul_i32 s24, s20, 18")
    A("s_add_u32 s24, s24, 2")
    A("s_cmp_eq_u32 s20, 0")
    A("s_cselect_b32 s24, 0, s24")
    A("s_mul_i32 s25, s22, 74")
    A("s_add_u32 s25, s25, s24")
    A("s_lshl_b32 s25, s25, 12")
    A("s_mul_i32 s26, s23, 74")
    A("s_add_u32 s26, s26, s24")
    A("s_mul_i32 s26, s26, 5120")
    A("s_waitcnt lgkmcnt(0)")
    srd(A, 8, 60, 61, ACT_BYTES, WS_ACT)
    srd(A, 12, 60, 61, WF_BYTES, WS_WF)
    srd(A, 16, 4, 5, 2048 * 1280)
    srd(A, 28, 6, 7, 2048 * 1280)
    VX = 8
    VG = 18
    VL = 23
    A("s_mul_i32 s27, s22, %d", 64 * 1280)
    A("s_mul_i32 s32, s23, 160")
    A("s_add_u32 s27, s27, s32")
    for i in range(5):
        A("v_add_u32 v4, %d, v0", 256 * i)
        A("v_mul_u32_u24 v5, 3277, v4")
        A("v_lshrrev_b32 v5, 16, v5")
        A("v_mul_u32_u24 v6, 20, v5")
        A("v_sub_u32 v6, v4, v6")
        A("v_mul_u32_u24 v7, 1280, v5")
        A("v_lshl_add_u32 v7, v6, 3, v7")
        A("v_add_u32 v%d, s27, v7", VG + i)
        A("v_mul_u32_u24 v7, 336, v5")
        A("v_lshl_add_u32 v%d, v6, 4, v7", VL + i)
        A("buffer_load_dwordx2 v[%d:%d], v%d, s[16:19], 0 offen", VX + 2 * i, VX + 2 * i + 1, VG + i)
    FR = 32
    def issue(st):
        b = FR + (st % D) * 36
        for t in range(4):
            A("buffer_load_dwordx4 v[%d:%d], v2, s[8:11], s25 offen offset:%d", b + 4 * t, b + 4 * t + 3, 1024 * t)
        for n in range(4):
            A("buffer_load_dwordx4 v[%d:%d], v2, s[12:15], s26 offen offset:%d", b + 16 + 4 * n, b + 16 + 4 * n + 3, 1024 * n)
        A("buffer_load_dwordx4 v[%d:%d], v3, s[12:15], s26 offen", b + 32, b + 35)
        A("s_add_u32 s25, s25, 4096")
        A("s_add_u32 s26, s26, 5120")
    def body(n, tag):
        for st in range(min(D, n)):
            issue(st)
        for st in range(n):
            issued = min(st + D - 1, n - 1)
            A("s_waitcnt vmcnt(%d)", (issued - st) * 9)
            b = FR + (st % D) * 36
            for nt in range(5):
                for tt in range(4):
                    acc = (nt * 4 + tt) * 4
                    C = "a[%d:%d]" % (acc, acc + 3)
                    A("v_mfma_f32_16x16x32_bf16 %s, v[%d:%d], v[%d:%d], %s", C, b + 16 + 4 * nt, b + 16 + 4 * nt + 3, b + 4 * tt, b + 4 * tt + 3, C if st > 0 else "0")
            if st + D < n:
                issue(st + D)
    A("s_cmp_eq_u32 s20, 0")
    A("s_cbranch_scc0 L_k2_w18")
    body(20, "a")
    A("s_branch L_k2_epi")
    A.label("L_k2_w18")
    body(18, "b")
    A.label("L_k2_epi")
    A.nop(16)
    A("v_and_b32 v4, 15, v1")
    A("v_mul_u32_u24 v4, 336, v4")
    A("v_lshrrev_b32 v5, 4, v1")
    A("v_lshl_add_u32 v4, v5, 4, v4")
    A("s_mul_i32 s32, s20, 21504")
    A("v_add_u32 v4, s32, v4")
    for nt in range(5):
        for tt in range(4):
            acc = (nt * 4 + tt) * 4
            A("ds_write_b128 v4, a[%d:%d] offset:%d", acc, acc + 3, tt * 16 * 336 + nt * 64)
    A("s_waitcnt lgkmcnt(0)")
    A("s_barrier")
    B = 32
    for i in range(5):
        for w in range(4):
            A("ds_read_b128 v[%d:%d], v%d offset:%d", B + i * 16 + 4 * w, B + i * 16 + 4 * w + 3, VL + i, w * 21504)
    A("s_waitcnt lgkmcnt(0)")
    for i in range(5):
        s = B + i * 16
        t = 120
        for r in range(4):
            A("v_add_f32 v%d, v%d, v%d", s + 4 + r, s + 4 + r, s + 8 + r)
            A("v_add_f32 v%d, v%d, v%d", s + 4 + r, s + 4 + r, s + 12 + r)
            A("v_cvt_pk_bf16_f32 v%d, 0, v%d", s + 4 + r, s + 4 + r)
            A("v_cvt_pk_bf16_f32 v%d, 0, v%d", s + r, s + r)
        for r in range(4):
            A("v_mul_f32 v%d, 0xbfb8aa3b, v%d", t + r, s + 4 + r)
        for r in range(4):
            A("v_exp_f32 v%d, v%d", t + r, t + r)
        for r in range(4):
            A("v_add_f32 v%d, 1.0, v%d", t + r, t + r)
        for r in range(4):
            A("v_rcp_f32 v%d, v%d", t + r, t + r)
        for r in range(4):
            A("v_mul_f32 v%d, v%d, v%d", s + 4 + r, s + 4 + r, t + r)
        for r in range(4):
            A("v_cvt_pk_bf16_f32 v%d, 0, v%d", s + 4 + r, s + 4 + r)
        for r in range(4):
            A("v_mul_f32 v%d, v%d, v%d", s + r, s + r, s + 4 + r)
        for r in range(4):
            A("v_cvt_pk_bf16_f32 v%d, 0, v%d", s + r, s + r)
        A("v_lshlrev_b32 v%d, 16, v%d", t, VX + 2 * i)
        A("v_and_b32 v%d, 0xffff0000, v%d", t + 1, VX + 2 * i)
        A("v_lshlrev_b32 v%d, 16, v%d", t + 2, VX + 2 * i + 1)
        A("v_and_b32 v%d, 0xffff0000, v%d", t + 3, VX + 2 * i + 1)
        for r in range(4):
            A("v_add_f32 v%d, v%d, v%d", s + r, s + r, t + r)
        A("v_cvt_pk_bf16_f32 v%d, v%d, v%d", s + 4, s, s + 1)
        A("v_cvt_pk_bf16_f32 v%d, v%d, v%d", s + 5, s + 2, s + 3)
        A("buffer_store_dwordx2 v[%d:%d], v%d, s[28:31], 0 offen", s + 4, s + 5, VG + i)
    A.label("L_k2_end")
    A("s_endpgm")
    return khead(name) + A.text() + kdesc(name, 512, 72, 256)
```

```python
import sys
from core import *
from k0 import gen_k0
from k1 import gen_k1
from k2 import gen_k2
NAME = "recurrent_scan__sliding_local_dilated__dense_activation_silu__prompt"
hdr = open("cdna_kernels/%s.s.ref" % NAME).read().split("; Override launch geometry")[0]
out = hdr
out += "; @launch kernel=rs_ln_kernel grid=(128,1,1) block=(640,1,1) lds=2048\n"
out += "; @launch kernel=rs_g1_kernel grid=(256,1,1) block=(256,1,1) lds=163840\n"
out += "; @launch kernel=rs_g2_kernel grid=(256,1,1) block=(256,1,1) lds=86016\n"
out += '.amdgcn_target "amdgcn-amd-amdhsa--gfx950"\n'
out += gen_k0("rs_ln_kernel")
out += gen_k1("rs_g1_kernel")
out += gen_k2("rs_g2_kernel")
dst = sys.argv[1] if len(sys.argv) > 1 else "cdna_kernels/%s.s" % NAME
open(dst, "w").write(out)
print("wrote", dst, len(out))
```

```python
import os
STAMP = os.environ.get("STAMP", "0") == "1"
class Asm:
    def __init__(self):
        self.lines = []
    def __call__(self, s, *a):
        self.lines.append("    " + (s % a if a else s))
    def label(self, s):
        self.lines.append(s + ":")
    def raw(self, s):
        self.lines.append(s)
    def comment(self, s):
        self.lines.append("    ; " + s)
    def nop(self, n):
        while n > 0:
            k = min(n, 16)
            self("s_nop %d", k - 1)
            n -= k
    def text(self):
        return "\n".join(self.lines) + "\n"

def vr(b, n=1):
    return "v%d" % b if n == 1 else "v[%d:%d]" % (b, b + n - 1)
def ar(b, n=1):
    return "a%d" % b if n == 1 else "a[%d:%d]" % (b, b + n - 1)
def sr(b, n=1):
    return "s%d" % b if n == 1 else "s[%d:%d]" % (b, b + n - 1)

def srd(A, d, base_lo, base_hi, nbytes, off=0):
    if off:
        A("s_add_u32 s%d, s%d, 0x%x", d, base_lo, off)
        A("s_addc_u32 s%d, s%d, 0", d + 1, base_hi)
        A("s_and_b32 s%d, s%d, 0xffff", d + 1, d + 1)
    else:
        A("s_mov_b32 s%d, s%d", d, base_lo)
        A("s_and_b32 s%d, s%d, 0xffff", d + 1, base_hi)
    A("s_mov_b32 s%d, 0x%x", d + 2, nbytes)
    A("s_mov_b32 s%d, 0x00020000", d + 3)

def kdesc(name, vgpr, sgpr, accum):
    sgpr = 96
    return f""".section .rodata,"a"
.p2align 6
.amdhsa_kernel {name}
  .amdhsa_next_free_vgpr {vgpr}
  .amdhsa_next_free_sgpr {sgpr}
  .amdhsa_accum_offset {accum}
  .amdhsa_group_segment_fixed_size 0
  .amdhsa_kernarg_size 72
  .amdhsa_user_sgpr_count 2
  .amdhsa_user_sgpr_kernarg_segment_ptr 1
  .amdhsa_system_sgpr_workgroup_id_x 1
.end_amdhsa_kernel
"""

def khead(name):
    return f""".text
.globl {name}
.p2align 8
.type {name},@function
{name}:
""" + ("    s_memrealtime s[92:93]\n" if STAMP else "")

WS_XN = 0
XN_BYTES = 128 * 20 * 1024
WS_ACT = 0x400000
ACT_BYTES = 32 * 74 * 4096
WS_WF = 0x1000000
WF_BYTES = 8 * 74 * 5120

WS_TS = 0x1800000
def stamp_init(A, kern, ws_lo, ws_hi, wave_sreg, vtmp):
    if not STAMP: return
    A("s_add_u32 s84, s%d, 0x%x", ws_lo, WS_TS)
    A("s_addc_u32 s85, s%d, 0", ws_hi)
    A("s_and_b32 s85, s85, 0xffff")
    A("s_mov_b32 s86, 0x400000")
    A("s_mov_b32 s87, 0x00020000")
    A("s_add_u32 s88, s2, %d", kern * 512)
    A("s_lshl_b32 s88, s88, 4")
    A("s_add_u32 s88, s88, s%d", wave_sreg)
    A("s_lshl_b32 s88, s88, 7")
    A("v_mov_b32 v%d, s92", vtmp)
    A("buffer_store_dword v%d, off, s[84:87], s88 offset:%d", vtmp, 124)
def stamp1(A, idx, vtmp):
    if not STAMP: return
    A("s_memrealtime s[90:91]")
    A("s_waitcnt lgkmcnt(0)")
    A("v_mov_b32 v%d, s90", vtmp)
    A("buffer_store_dword v%d, off, s[84:87], s88 offset:%d", vtmp, idx * 4)
def stamp(A, idx, vtmp):
    if not STAMP: return
    stamp1(A, idx, vtmp)
    A("s_memtime s[90:91]")
    A("s_waitcnt lgkmcnt(0)")
    A("v_mov_b32 v%d, s90", vtmp)
    A("buffer_store_dword v%d, off, s[84:87], s88 offset:%d", vtmp, idx * 4 + 16)
```

```python
from core import *

RW = 5
WSLOT = 16384
XBASE = RW * WSLOT
NKS = 20
AHEAD = 4
NB = 6

S_W, S_X, S_ACT = 8, 12, 16
S_WAVE, S_TP, S_HF, S_WK, S_RB, S_CG, S_TMP, S_TMP2, S_LDSW = 20, 21, 22, 23, 24, 25, 26, 27, 28
S_XM = 64
V_TID, V_LANE = 0, 1
V_L16 = 2
V_DMA = 8
V_TR = 10
V_XR, V_XRH, V_XWH = 32, 33, 34
V_XW = 4
V_ST = 2
XRES = 36
ACC = 128
VTOT = 208
A_WF = 0
A_XF = 24

class LQ:
    def __init__(self, A):
        self.A = A; self.n = 0
    def op(self, s, *a):
        self.A(s, *a); self.n += 1
        return self.n - 1
    def wait(self, seq):
        k = self.n - 1 - seq
        self.A("s_waitcnt lgkmcnt(%d)", min(max(k, 0), 15))

def xslot(typ): return 9280 if typ == 'Q' else 8256
def nfr(typ): return 11 if typ == 'Q' else 8

def setup(A, typ):
    t = [ACC + i for i in range(12)]
    A("v_and_b32 v%d, 63, v%d", V_LANE, V_TID)
    A("v_lshlrev_b32 v%d, 4, v%d", V_L16, V_LANE)
    A("s_and_b32 s%d, s%d, 3", S_TP, S_WAVE)
    A("s_lshr_b32 s%d, s%d, 2", S_HF, S_WAVE)
    A("s_lshl_b32 s%d, s%d, 11", S_LDSW, S_WAVE)
    pitch = 3840 if typ == 'Q' else 3456
    A("v_lshrrev_b32 v%d, 5, v%d", t[0], V_LANE)
    A("v_and_b32 v%d, 31, v%d", t[1], V_LANE)
    for i in range(2):
        A("s_lshl_b32 s%d, s%d, 2", S_TMP, S_WAVE)
        A("v_add_u32 v%d, s%d, v%d", t[2], S_TMP, t[0])
        A("v_add_u32 v%d, %d, v%d", t[2], 2 * i, t[2])
        A("v_and_b32 v%d, 7, v%d", t[3], t[2])
        A("v_lshlrev_b32 v%d, 1, v%d", t[3], t[3])
        A("v_xor_b32 v%d, v%d, v%d", t[3], t[3], t[1])
        A("v_and_b32 v%d, 0x13, v%d", t[4], t[2])
        A("v_and_b32 v%d, 4, v%d", t[5], t[2])
        A("v_lshl_or_b32 v%d, v%d, 1, v%d", t[4], t[5], t[4])
        A("v_and_b32 v%d, 8, v%d", t[5], t[2])
        A("v_lshrrev_b32 v%d, 1, v%d", t[5], t[5])
        A("v_or_b32 v%d, v%d, v%d", t[4], t[4], t[5])
        A("s_movk_i32 s%d, %d", S_TMP, pitch)
        A("v_mul_lo_u32 v%d, v%d, s%d", t[4], t[4], S_TMP)
        if typ == 'Q':
            A("v_min_u32 v%d, 29, v%d", t[3], t[3])
            A("v_mul_u32_u24 v%d, 26, v%d", t[5], t[3])
            A("v_lshrrev_b32 v%d, 8, v%d", t[5], t[5])
            A("v_mul_u32_u24 v%d, 1120, v%d", t[5], t[5])
            A("v_add_u32 v%d, v%d, v%d", t[4], t[4], t[5])
            A("v_lshl_add_u32 v%d, v%d, 4, v%d", t[4], t[3], t[4])
            A("s_mul_i32 s%d, s%d, 160", S_TMP, S_CG)
            A("v_add_u32 v%d, s%d, v%d", V_DMA + i, S_TMP, t[4])
        else:
            A("v_lshl_add_u32 v%d, v%d, 4, v%d", t[4], t[3], t[4])
            A("v_add_u32 v%d, s%d, v%d", V_DMA + i, S_CG, t[4])
    A("v_lshrrev_b32 v%d, 4, v%d", t[0], V_LANE)
    A("v_bfe_u32 v%d, v%d, 2, 2", t[1], V_LANE)
    A("v_and_b32 v%d, 1, v%d", t[2], t[0])
    A("v_lshl_add_u32 v%d, v%d, 2, v%d", t[2], t[2], t[1])
    A("v_lshlrev_b32 v%d, 1, v%d", t[2], t[2])
    A("v_lshrrev_b32 v%d, 1, v%d", t[3], t[0])
    A("v_lshlrev_b32 v%d, 4, v%d", t[3], t[3])
    A("v_lshrrev_b32 v%d, 1, v%d", t[4], t[2])
    A("v_add_u32 v%d, v%d, v%d", t[3], t[3], t[4])
    A("v_lshlrev_b32 v%d, 9, v%d", t[3], t[3])
    A("v_and_b32 v%d, 3, v%d", t[4], V_LANE)
    A("v_lshlrev_b32 v%d, 3, v%d", t[4], t[4])
    def tr_addr(dst, s_b0):
        A("v_add_u32 v%d, s%d, v%d", t[5], s_b0, t[4])
        A("v_lshrrev_b32 v%d, 4, v%d", t[6], t[5])
        A("v_xor_b32 v%d, v%d, v%d", t[6], t[6], t[2])
        A("v_and_b32 v%d, 8, v%d", t[5], t[5])
        A("v_lshl_add_u32 v%d, v%d, 4, v%d", t[5], t[6], t[5])
        A("v_add_u32 v%d, v%d, v%d", dst, t[5], t[3])
        A("v_add_u32 v%d, 0x%x, v%d", dst + 11, 4 * WSLOT, dst)
    if typ == 'Q':
        for f in range(9):
            A("s_mul_i32 s%d, s%d, 80", S_TMP, S_HF)
            A("s_add_u32 s%d, s%d, %d", S_TMP, S_TMP, (f // 3) * 160 + 32 * (f % 3))
            tr_addr(V_TR + f, S_TMP)
        for hh in range(2):
            A("s_min_u32 s%d, s%d, 2", S_TMP2, S_TP)
            A("s_lshl_b32 s%d, s%d, 5", S_TMP2, S_TMP2)
            A("s_mul_i32 s%d, s%d, 80", S_TMP, S_HF)
            A("s_add_u32 s%d, s%d, s%d", S_TMP, S_TMP, S_TMP2)
            A("s_add_u32 s%d, s%d, %d", S_TMP, S_TMP, 160 * (hh + 1))
            tr_addr(V_TR + 9 + hh, S_TMP)
    else:
        for f in range(8):
            A("s_lshl_b32 s%d, s%d, 8", S_TMP, S_HF)
            A("s_add_u32 s%d, s%d, %d", S_TMP, S_TMP, 32 * f)
            tr_addr(V_TR + f, S_TMP)
    fo = 1 if typ == 'Q' else 0
    A("v_and_b32 v%d, 15, v%d", t[0], V_LANE)
    A("v_lshrrev_b32 v%d, 4, v%d", t[1], V_LANE)
    A("v_lshrrev_b32 v%d, 2, v%d", t[2], t[0])
    A("v_sub_u32 v%d, 4, v%d", t[2], t[2])
    A("v_and_b32 v%d, 3, v%d", t[2], t[2])
    A("v_xor_b32 v%d, v%d, v%d", t[1], t[1], t[2])
    A("v_lshlrev_b32 v%d, 6, v%d", t[0], t[0])
    A("v_lshl_add_u32 v%d, v%d, 4, v%d", t[0], t[1], t[0])
    A("v_add_u32 v%d, 0x%x, v%d", V_XRH, XBASE, t[0])
    A("s_lshl_b32 s%d, s%d, 11", S_TMP, S_TP)
    A("s_add_u32 s%d, s%d, %d", S_TMP, S_TMP, fo * 1024)
    A("v_add_u32 v%d, s%d, v%d", V_XR, S_TMP, V_XRH)
    A("v_add_u32 v%d, %d, v%d", 35, 4 * xslot(typ), V_XR)
    A("v_lshrrev_b32 v%d, 4, v%d", t[0], V_LANE)
    A("v_lshlrev_b32 v%d, 6, v%d", t[0], t[0])
    A("v_bfe_u32 v%d, v%d, 2, 2", t[1], V_LANE)
    A("v_mul_u32_u24 v%d, %d, v%d", t[1], xslot(typ), t[1])
    A("v_add_u32 v%d, v%d, v%d", t[0], t[0], t[1])
    A("s_lshl_b32 s%d, s%d, 10", S_TMP, S_WAVE)
    A("s_add_u32 s%d, s%d, 0x%x", S_TMP, S_TMP, XBASE + fo * 1024)
    A("v_add_u32 v%d, s%d, v%d", t[0], S_TMP, t[0])
    A("v_and_b32 v%d, 3, v%d", t[1], V_LANE)
    for i4 in range(4):
        A("v_xor_b32 v%d, %d, v%d", t[2], (4 - i4) & 3, t[1])
        A("v_lshl_add_u32 v%d, v%d, 4, v%d", V_XW + i4, t[2], t[0])
        A("v_add_u32 v%d, %d, v%d", V_XW + i4, i4 * 256, V_XW + i4)
    if typ == 'Q':
        A("v_lshrrev_b32 v%d, 5, v%d", t[0], V_LANE)
        A("s_lshl_b32 s%d, s%d, 1", S_TMP, S_WAVE)
        A("v_add_u32 v%d, s%d, v%d", t[0], S_TMP, t[0])
        A("v_lshlrev_b32 v%d, 6, v%d", t[0], t[0])
        A("v_bfe_u32 v%d, v%d, 2, 2", t[2], V_LANE)
        A("v_mul_u32_u24 v%d, %d, v%d", t[2], xslot(typ), t[2])
        A("v_add_u32 v%d, v%d, v%d", t[0], t[0], t[2])
        A("s_lshr_b32 s%d, s%d, 1", S_TMP, S_WAVE)
        A("s_sub_u32 s%d, 4, s%d", S_TMP, S_TMP)
        A("s_and_b32 s%d, s%d, 3", S_TMP, S_TMP)
        A("v_xor_b32 v%d, s%d, v%d", t[2], S_TMP, t[1])
        A("v_lshl_add_u32 v%d, v%d, 4, v%d", t[0], t[2], t[0])
        A("v_add_u32 v%d, 0x%x, v%d", V_XWH, XBASE, t[0])
    for q in range(4):
        m = 0x000F000F << (4 * q)
        A("s_mov_b32 s%d, 0x%x", S_XM + 2 * q, m)
        A("s_mov_b32 s%d, 0x%x", S_XM + 2 * q + 1, m)

def issue_w(A, typ, s, only=None):
    slot = s % RW
    pitch = 3840 if typ == 'Q' else 3456
    for i in range(2):
        if only is not None and i != only: continue
        A("s_add_u32 m0, s%d, 0x%x", S_LDSW, slot * WSLOT + i * 1024)
        A("s_nop 0")
        A("buffer_load_dwordx4 v%d, s[%d:%d], s%d offen lds", V_DMA + i, S_W, S_W + 3, S_WK)
    if only is None or only == 1:
        A("s_add_u32 s%d, s%d, %d", S_WK, S_WK, 32 * pitch)

def ln_addr(A, typ):
    t0, t1, t2 = ACC + 76, ACC + 77, ACC + 78
    A("s_lshl_b32 s%d, s%d, 3", S_TMP, S_RB)
    A("s_add_u32 s%d, s%d, s%d", S_TMP, S_TMP, S_WAVE)
    A("s_mul_i32 s%d, s%d, %d", S_TMP, S_TMP, 16 * 1280)
    A("v_lshrrev_b32 v%d, 4, v%d", t0, V_LANE)
    A("v_mul_u32_u24 v%d, 1280, v%d", t0, t0)
    A("v_and_b32 v%d, 15, v%d", t1, V_LANE)
    A("v_lshl_add_u32 v%d, v%d, 4, v%d", t0, t1, t0)
    A("v_add_u32 v%d, s%d, v%d", t0, S_TMP, t0)
    if typ == 'Q':
        A("s_lshl_b32 s%d, s%d, 7", S_TMP, S_RB)
        A("s_lshl_b32 s%d, s%d, 1", S_TMP2, S_WAVE)
        A("s_add_u32 s%d, s%d, s%d", S_TMP, S_TMP, S_TMP2)
        A("s_sub_i32 s%d, s%d, 16", S_TMP, S_TMP)
        A("s_max_i32 s%d, s%d, 0", S_TMP, S_TMP)
        A("v_lshrrev_b32 v%d, 5, v%d", t1, V_LANE)
        A("v_add_u32 v%d, s%d, v%d", t1, S_TMP, t1)
        A("v_mul_u32_u24 v%d, 1280, v%d", t1, t1)
        A("v_and_b32 v%d, 31, v%d", t2, V_LANE)
        A("v_lshl_add_u32 v%d, v%d, 4, v%d", t1, t2, t1)

def ln_load_group(A, i4):
    t0 = ACC + 76
    A("s_movk_i32 s%d, %d", S_TMP2, i4 * 5120)
    for j in range(5):
        r = XRES + (i4 * 5 + j) * 4
        A("buffer_load_dwordx4 v[%d:%d], v%d, s[%d:%d], s%d offen offset:%d", r, r + 3, t0, S_X, S_X + 3, S_TMP2, j * 256)

def ln_load_halo(A):
    t1 = ACC + 77
    for r in range(4):
        A("v_mov_b32 v%d, 0", XRES + 88 + r)
    for j in range(2):
        r = XRES + 80 + 4 * j
        A("buffer_load_dwordx4 v[%d:%d], v%d, s[%d:%d], 0 offen offset:%d", r, r + 3, t1, S_X, S_X + 3, j * 512)
    A("s_mov_b32 exec_lo, 0x0000ffff"); A("s_mov_b32 exec_hi, 0x0000ffff")
    A("buffer_load_dwordx4 v[%d:%d], v%d, s[%d:%d], 0 offen offset:1024", XRES + 88, XRES + 91, t1, S_X, S_X + 3)
    A("s_mov_b64 exec, -1")

def ln_groups(A, groups):
    ONES = ACC + 70
    ng = len(groups)
    SUM = [ACC + 4 * i for i in range(ng)]
    TMP = ACC + 12
    lists = []
    for gi, (regs, kind) in enumerate(groups):
        L = []
        b = SUM[gi]
        for k, r in enumerate(regs):
            s_, q_ = b + 2 * (k & 1), b + 2 * (k & 1) + 1
            L.append("v_dot2_f32_bf16 v%d, v%d, v%d, %s" % (s_, r, ONES, "0" if k < 2 else "v%d" % s_))
            L.append("v_dot2_f32_bf16 v%d, v%d, v%d, %s" % (q_, r, r, "0" if k < 2 else "v%d" % q_))
        lists.append(L)
    n = max(len(l) for l in lists)
    for i in range(n):
        for l in lists:
            if i < len(l): A(l[i])
    A.nop(4)
    for gi in range(ng):
        b = SUM[gi]
        A("v_add_f32 v%d, v%d, v%d", b, b, b + 2)
        A("v_add_f32 v%d, v%d, v%d", b + 1, b + 1, b + 3)
    A.nop(2)
    for sh in (8, 4, 2, 1):
        for gi in range(ng):
            for d in range(2):
                r = SUM[gi] + d
                A("v_add_f32_dpp v%d, v%d, v%d row_ror:%d row_mask:0xf bank_mask:0xf", r, r, r, sh)
        A.nop(2)
    for gi, (regs, kind) in enumerate(groups):
        if kind == 'h':
            for d in range(2):
                A("v_mov_b32 v%d, v%d", TMP + d, SUM[gi] + d)
            A.nop(2)
            for d in range(2):
                A("v_permlane16_swap_b32 v%d, v%d", SUM[gi] + d, TMP + d)
            A.nop(2)
            for d in range(2):
                A("v_add_f32 v%d, v%d, v%d", SUM[gi] + d, SUM[gi] + d, TMP + d)
    A("s_mov_b32 s%d, 0x3acccccd", S_TMP)
    A("s_mov_b32 s%d, 0x3727c5ac", S_TMP2)
    def per(fmt, nop=0):
        for gi in range(ng):
            m, v, t = SUM[gi], SUM[gi] + 1, TMP + gi
            A(fmt.format(m=m, v=v, t=t, c=S_TMP, e=S_TMP2))
        if nop: A.nop(nop)
    per("v_mul_f32 v{m}, s{c}, v{m}")
    per("v_mul_f32 v{v}, s{c}, v{v}")
    per("v_fma_f32 v{v}, -v{m}, v{m}, v{v}")
    per("v_max_f32 v{v}, 0, v{v}")
    per("v_cvt_pk_bf16_f32 v{m}, 0, v{m}")
    per("v_cvt_pk_bf16_f32 v{v}, 0, v{v}")
    per("v_add_f32 v{v}, s{e}, v{v}")
    per("v_cvt_pk_bf16_f32 v{v}, 0, v{v}")
    per("v_sqrt_f32 v{v}, v{v}", 1)
    per("v_xor_b32 v{m}, 0x80000000, v{m}")
    per("v_cvt_pk_bf16_f32 v{v}, 0, v{v}")
    per("v_rcp_f32 v{t}, v{v}", 1)
    per("v_fma_f32 v{v}, -v{v}, v{t}, 2.0")
    per("v_mul_f32 v{v}, v{t}, v{v}")
    T = ACC + 20
    for gi, (regs, kind) in enumerate(groups):
        m = SUM[gi]
        for b in range(0, len(regs), 4):
            rr = regs[b:b + 4]
            for i, x in enumerate(rr):
                A("v_lshlrev_b32 v%d, 16, v%d", T + 2 * i, x)
                A("v_and_b32 v%d, 0xffff0000, v%d", T + 2 * i + 1, x)
            for i, x in enumerate(rr):
                A("v_pk_add_f32 v[%d:%d], v[%d:%d], v[%d:%d] op_sel_hi:[1,0]", T + 2 * i, T + 2 * i + 1, T + 2 * i, T + 2 * i + 1, m, m + 1)
            for i in range(8):
                A("v_cvt_pk_bf16_f32 v%d, 0, v%d", T + i, T + i)
            for i, x in enumerate(rr):
                A("v_pk_mul_f32 v[%d:%d], v[%d:%d], v[%d:%d] op_sel:[0,1] op_sel_hi:[1,1]", T + 2 * i, T + 2 * i + 1, T + 2 * i, T + 2 * i + 1, m, m + 1)
            for i, x in enumerate(rr):
                A("v_cvt_pk_bf16_f32 v%d, v%d, v%d", x, T + 2 * i, T + 2 * i + 1)

def ln_phase(A, typ):
    G = lambda i4: ([XRES + i4 * 20 + k for k in range(20)], 'm')
    H = ([XRES + 80 + k for k in range(12)], 'h')
    nh = 3 if typ == 'Q' else 0
    ln_addr(A, typ)
    if typ == 'Q': ln_load_halo(A)
    ln_load_group(A, 0)
    ln_load_group(A, 1)
    setup(A, typ)
    A("v_mov_b32 v%d, 0x3f803f80", ACC + 70)
    ln_load_group(A, 2)
    A("s_waitcnt vmcnt(10)")
    stamp1(A, 28, 3)
    ln_groups(A, ([H] if typ == 'Q' else []) + [G(0)])
    ln_load_group(A, 3)
    A("s_waitcnt vmcnt(10)")
    ln_groups(A, [G(1)])
    for s in range(RW - 1):
        issue_w(A, typ, s)
    A("s_waitcnt vmcnt(%d)", 5 + 2 * (RW - 1))
    stamp1(A, 29, 3)
    ln_groups(A, [G(2)])
    A("s_waitcnt vmcnt(%d)", 2 * (RW - 1))
    ln_groups(A, [G(3)])

import os
NOXW = os.environ.get("NOXW", "0") == "1"
NOBAR = os.environ.get("NOBAR", "0") == "1"
NOTR = os.environ.get("NOTR", "0") == "1"
NOMF = os.environ.get("NOMF", "0") == "1"
def x_write(A, Q, typ, gam):
    if NOXW and gam > 1: return
    base = (gam & 1) * 4 * xslot(typ)
    for i4 in range(4):
        r = XRES + (i4 * 5 + gam) * 4
        Q.op("ds_write_b128 v%d, v[%d:%d] offset:%d", V_XW + i4, r, r + 3, base)
    if typ == 'Q':
        m = 0x0000ffff if (gam & 1) == 0 else 0xffff0000
        A("s_mov_b32 exec_lo, 0x%x", m); A("s_mov_b32 exec_hi, 0x%x", m)
        r = XRES + 80 + 4 * (gam >> 1)
        Q.op("ds_write_b128 v%d, v[%d:%d] offset:%d", V_XWH, r, r + 3, base)
        A("s_mov_b64 exec, -1")

def x_read(A, Q, typ, s):
    base = (((s >> 2) & 1) * 4 + (s & 3)) * xslot(typ)
    b = A_XF + (s & 1) * 12
    last = None
    for a in range(2):
        last = Q.op("ds_read_b128 a[%d:%d], v%d offset:%d", b + 4 * a, b + 4 * a + 3, V_XR if ((s >> 2) & 1) == 0 else 35, (s & 3) * xslot(typ) + a * 1024)
    if typ == 'Q':
        last = Q.op("ds_read_b128 a[%d:%d], v%d offset:%d", b + 8, b + 11, V_XRH, base)
    return last

def w_read(A, Q, typ, s, f):
    nf = nfr(typ)
    F = s * nf + f
    buf = A_WF + (F % NB) * 4
    slot = s % RW
    st, sin = slot // 4, slot % 4
    last = None
    if NOTR and s > 0: return Q.n - 1
    for h in range(2):
        last = Q.op("ds_read_b64_tr_b16 a[%d:%d], v%d offset:%d", buf + 2 * h, buf + 2 * h + 1, V_TR + st * 11 + f, sin * WSLOT + h * 4096)
    return last

def w_read_h(A, Q, typ, s, f, h):
    nf = nfr(typ)
    F = s * nf + f
    buf = A_WF + (F % NB) * 4
    slot = s % RW
    st, sin = slot // 4, slot % 4
    if NOTR and s > 0: return Q.n - 1
    return Q.op("ds_read_b64_tr_b16 a[%d:%d], v%d offset:%d", buf + 2 * h, buf + 2 * h + 1, V_TR + st * 11 + f, sin * WSLOT + h * 4096)

def mfma_a(A, typ, s, f, a):
    nf = nfr(typ)
    F = s * nf + f
    buf = A_WF + (F % NB) * 4
    xb = A_XF + (s & 1) * 12
    W = "a[%d:%d]" % (buf, buf + 3)
    if NOMF and s > 0: return
    def one(acc, X, nor):
        C = "v[%d:%d]" % (acc, acc + 3)
        Cin = C if s > 0 else "0"
        if nor: A("v_mfma_f32_16x16x32_bf16 %s, %s, %s, %s", C, X, W, Cin)
        else:   A("v_mfma_f32_16x16x32_bf16 %s, %s, %s, %s", C, W, X, Cin)
    if typ == 'Q' and f >= 9:
        if a == 0: one(acc_of(typ, 0, f), "a[%d:%d]" % (xb + 8, xb + 11), f == 10)
    else:
        one(acc_of(typ, a, f), "a[%d:%d]" % (xb + 4 * a, xb + 4 * a + 3), typ == 'Q' and f >= 6)

def acc_of(typ, a, f):
    if typ == 'Q':
        return ACC + (a * 9 + f) * 4 if f < 9 else ACC + 72 + (f - 9) * 4
    return ACC + (a * 8 + f) * 4

def mfma(A, typ, s, f):
    nf = nfr(typ)
    F = s * nf + f
    buf = A_WF + (F % NB) * 4
    xb = A_XF + (s & 1) * 12
    W = "a[%d:%d]" % (buf, buf + 3)
    if NOMF and s > 0: return
    def one(acc, X, nor):
        C = "v[%d:%d]" % (acc, acc + 3)
        Cin = C if s > 0 else "0"
        if nor: A("v_mfma_f32_16x16x32_bf16 %s, %s, %s, %s", C, X, W, Cin)
        else:   A("v_mfma_f32_16x16x32_bf16 %s, %s, %s, %s", C, W, X, Cin)
    if typ == 'Q' and f >= 9:
        one(acc_of(typ, 0, f), "a[%d:%d]" % (xb + 8, xb + 11), f == 10)
    else:
        for a in range(2):
            one(acc_of(typ, a, f), "a[%d:%d]" % (xb + 4 * a, xb + 4 * a + 3), typ == 'Q' and f >= 6)

def main_loop(A, typ):
    Q0 = LQ(A)
    x_write(A, Q0, typ, 0)
    A("s_waitcnt lgkmcnt(0)")
    A("s_cmp_eq_u32 s%d, 0", S_HF)
    A("s_cbranch_scc0 L_k1_%s_ph1", typ)
    main_loop_ph(A, typ, 0)
    A("s_branch L_k1_%s_done", typ)
    A.label("L_k1_%s_ph1" % typ)
    main_loop_ph(A, typ, 1)
    A.label("L_k1_%s_done" % typ)

def main_loop_ph(A, typ, ph):
    nf = nfr(typ)
    Q = LQ(A)
    total = NKS * nf
    wseq = {}; xseq = {}
    doff = (nf // 2) if (ph and os.environ.get("NOSTAG","0")!="1") else 0
    pend = {}
    BAR2 = os.environ.get("BAR2", "0") == "1"
    def boundary(sn, F):
        if BAR2:
            if sn % 2 == 0:
                issued = 3 if sn <= 2 else min(sn + 1, NKS - 1)
                A("s_waitcnt vmcnt(%d)", (issued - (sn + 1)) * 2)
                if not NOBAR: A("s_barrier")
                if sn >= 2 and os.environ.get("NODMA","0") != "1":
                    k = 0
                    for st_ in (sn + 2, sn + 3):
                        if st_ < NKS:
                            pend.setdefault(F + doff + k, []).append((st_, 0))
                            pend.setdefault(F + doff + k + 2, []).append((st_, 1))
                            k += 4
                if (sn & 3) == 2 and (sn >> 2) + 1 < 5:
                    x_write(A, Q, typ, (sn >> 2) + 1)
            xseq[sn] = x_read(A, Q, typ, sn)
            return
        issued = min(sn - 1 + RW - 2, NKS - 1) if sn > 0 else RW - 2
        A("s_waitcnt vmcnt(%d)", (issued - sn) * 2)
        if not NOBAR: A("s_barrier")
        if os.environ.get("STAGE","0")=="1": stamp1(A, 8 + sn, 3)
        if (sn & 3) == 1 and (sn >> 2) + 1 < 5:
            x_write(A, Q, typ, (sn >> 2) + 1)
        xseq[sn] = x_read(A, Q, typ, sn)
        if sn > 0 and sn + RW - 2 < NKS and os.environ.get("NODMA","0") != "1":
            pend.setdefault(F + doff, []).append((sn + RW - 2, 0))
            pend.setdefault(F + doff + 2, []).append((sn + RW - 2, 1))
    boundary(0, 0)
    for F in range(AHEAD):
        wseq[F] = w_read(A, Q, typ, F // nf, F % nf)
    for F in range(total):
        s, f = F // nf, F % nf
        Fn = F + AHEAD
        if Fn < total and Fn % nf == 0:
            boundary(Fn // nf, F)
        for (st_, i_) in pend.pop(F, []):
            issue_w(A, typ, st_, only=i_)
        if F % 2 == 0:
            need = max(wseq[F], xseq[s])
            if F + 1 < total:
                need = max(need, wseq[F + 1], xseq[(F + 1) // nf])
            Q.wait(need)
        mfma_a(A, typ, s, f, 0)
        if Fn < total: w_read_h(A, Q, typ, Fn // nf, Fn % nf, 0)
        mfma_a(A, typ, s, f, 1)
        if Fn < total: wseq[Fn] = w_read_h(A, Q, typ, Fn // nf, Fn % nf, 1)
    assert not pend

def interleave(A, lists):
    n = max(len(l) for l in lists)
    for i in range(n):
        for l in lists:
            if i < len(l):
                A(l[i])

def tile_base(A, dst, a):
    A("s_lshl_b32 s%d, s%d, 3", S_TMP, S_RB)
    A("s_lshl_b32 s%d, s%d, 1", S_TMP2, S_TP)
    A("s_add_u32 s%d, s%d, s%d", S_TMP, S_TMP, S_TMP2)
    A("s_add_u32 s%d, s%d, %d", S_TMP, S_TMP, a)
    A("s_lshr_b32 s%d, s%d, 2", S_TMP2, S_TMP)
    A("s_mul_i32 s%d, s%d, %d", S_TMP2, S_TMP2, 74 * 4096)
    A("s_and_b32 s%d, s%d, 3", S_TMP, S_TMP)
    A("s_lshl_b32 s%d, s%d, 10", S_TMP, S_TMP)
    A("s_add_u32 s%d, s%d, s%d", dst, S_TMP, S_TMP2)

def h_epilogue(A):
    A.nop(16)
    T = XRES
    for a in range(2):
        tile_base(A, 48, a)
        A("s_lshl_b32 s%d, s%d, 6", S_TMP2, S_CG)
        A("s_add_u32 s48, s48, s%d", S_TMP2)
        A("s_lshl_b32 s%d, s%d, 14", S_TMP2, S_HF)
        A("s_add_u32 s48, s48, s%d", S_TMP2)
        A("s_add_u32 s48, s48, %d", 20 * 4096)
        regs = [ACC + (a * 8) * 4 + i for i in range(32)]
        for x in regs: A("v_cvt_pk_bf16_f32 v%d, 0, v%d", x, x)
        for i, x in enumerate(regs): A("v_mul_f32 v%d, 0xbfb8aa3b, v%d", T + i, x)
        for i, x in enumerate(regs): A("v_exp_f32 v%d, v%d", T + i, T + i)
        for i, x in enumerate(regs): A("v_add_f32 v%d, 1.0, v%d", T + i, T + i)
        for i, x in enumerate(regs): A("v_rcp_f32 v%d, v%d", T + i, T + i)
        for i, x in enumerate(regs): A("v_mul_f32 v%d, v%d, v%d", x, x, T + i)
        for T2 in range(4):
            o = T + 32 + 4 * T2 + 16 * a
            r0 = ACC + (a * 8 + 2 * T2) * 4
            for d in range(4):
                A("v_cvt_pk_bf16_f32 v%d, v%d, v%d", o + d, r0 + 2 * d, r0 + 2 * d + 1)
            A("buffer_store_dwordx4 v[%d:%d], v%d, s[%d:%d], s48 offen offset:%d", o, o + 3, V_L16, S_ACT, S_ACT + 3, 0)
            A("s_add_u32 s48, s48, 4096")

QP, KP, VP, TT, BP, BC, BP0, QF = 36, 48, 66, 84, 100, 104, 108, 112
EX0 = 0

def q_epilogue(A):
    A.nop(16)
    for a in range(2):
        for T in range(3):
            acc = acc_of('Q', a, T)
            A("v_cvt_pk_bf16_f32 v%d, v%d, v%d", QP + a * 6 + 2 * T, acc, acc + 1)
            A("v_cvt_pk_bf16_f32 v%d, v%d, v%d", QP + a * 6 + 2 * T + 1, acc + 2, acc + 3)
            acc = acc_of('Q', a, 3 + T)
            A("v_cvt_pk_bf16_f32 v%d, v%d, v%d", KP + (a + 1) * 6 + 2 * T, acc, acc + 1)
            A("v_cvt_pk_bf16_f32 v%d, v%d, v%d", KP + (a + 1) * 6 + 2 * T + 1, acc + 2, acc + 3)
            acc = acc_of('Q', a, 6 + T)
            A("v_cvt_pk_bf16_f32 v%d, v%d, v%d", VP + T * 6 + (a + 1) * 2, acc, acc + 1)
            A("v_cvt_pk_bf16_f32 v%d, v%d, v%d", VP + T * 6 + (a + 1) * 2 + 1, acc + 2, acc + 3)
    for hh in range(2):
        acc = acc_of('Q', 0, 9 + hh)
        A("v_cvt_pk_bf16_f32 v%d, v%d, v%d", TT + 2 * hh, acc, acc + 1)
        A("v_cvt_pk_bf16_f32 v%d, v%d, v%d", TT + 2 * hh + 1, acc + 2, acc + 3)
    ah, ar_, aw, ahl = TT + 4, TT + 5, TT + 6, TT + 7
    A("v_lshlrev_b32 v%d, 3, v%d", ah, V_LANE)
    A("s_mul_i32 s%d, s%d, 15360", S_TMP, S_HF)
    A("s_add_u32 s%d, s%d, 0x%x", S_TMP, S_TMP, EX0)
    A("v_add_u32 v%d, s%d, v%d", ah, S_TMP, ah)
    A("s_mul_i32 s%d, s%d, 3072", S_TMP, S_TP)
    A("v_add_u32 v%d, s%d, v%d", ar_, S_TMP, ah)
    A("v_add_u32 v%d, 3072, v%d", aw, ar_)
    for T in range(3):
        A("ds_write_b64 v%d, v[%d:%d] offset:%d", aw, KP + 12 + 2 * T, KP + 12 + 2 * T + 1, T * 512)
        A("ds_write_b64 v%d, v[%d:%d] offset:%d", aw, VP + T * 6 + 4, VP + T * 6 + 5, (3 + T) * 512)
    A("s_min_u32 s%d, s%d, 2", S_TMP, S_TP)
    A("s_lshl_b32 s%d, s%d, 9", S_TMP, S_TMP)
    A("v_add_u32 v%d, s%d, v%d", ahl, S_TMP, ah)
    A("ds_write_b64 v%d, v[%d:%d]", ahl, TT, TT + 1)
    A("ds_write_b64 v%d, v[%d:%d] offset:1536", ahl, TT + 2, TT + 3)
    A("s_waitcnt lgkmcnt(0)")
    A("s_barrier")
    for T in range(3):
        A("ds_read_b64 v[%d:%d], v%d offset:%d", KP + 2 * T, KP + 2 * T + 1, ar_, T * 512)
        A("ds_read_b64 v[%d:%d], v%d offset:%d", VP + T * 6, VP + T * 6 + 1, ar_, (3 + T) * 512)
    j, g4, t, neg = TT + 8, TT + 9, TT + 10, TT + 11
    A("v_and_b32 v%d, 15, v%d", j, V_LANE)
    A("v_lshrrev_b32 v%d, 4, v%d", g4, V_LANE)
    A("v_lshlrev_b32 v%d, 2, v%d", t, g4)
    A("v_sub_u32 v%d, v%d, v%d", t, j, t)
    A("v_mov_b32 v%d, v%d", j, t)
    A("v_mov_b32 v%d, 0xf149f2ca", neg)
    for r in range(4):
        A("v_subrev_u32 v%d, %d, v%d", t, r, j)
        A("v_and_b32 v%d, 0x80000001, v%d", t, t)
        A("v_cmp_eq_u32 vcc, 0, v%d", t)
        A("s_nop 1")
        A("v_cndmask_b32 v%d, v%d, 0, vcc", BC + r, neg)
        A("v_add_u32 v%d, %d, v%d", t, 16 - r, j)
        A("v_and_b32 v%d, 1, v%d", TT + 12, t)
        A("v_cmp_eq_u32 vcc, 0, v%d", TT + 12)
        A("v_cmp_ge_i32 s[30:31], 14, v%d", t)
        A("s_nop 1")
        A("s_and_b64 vcc, vcc, s[30:31]")
        A("s_nop 1")
        A("v_cndmask_b32 v%d, v%d, 0, vcc", BP + r, neg)
    A("s_or_b32 s%d, s%d, s%d", S_TMP, S_RB, S_TP)
    A("s_cmp_eq_u32 s%d, 0", S_TMP)
    A("s_cselect_b64 vcc, -1, 0")
    A("s_nop 1")
    for r in range(4):
        A("v_cndmask_b32 v%d, v%d, v%d, vcc", BP0 + r, BP + r, neg)
    A("s_mov_b32 s32, 0xaaaaaaaa"); A("s_mov_b32 s33, 0xaaaaaaaa")
    A("s_mov_b32 s34, 0xffff0000"); A("s_mov_b32 s35, 0xffffffff")
    A("s_mov_b32 s40, 0x0000ffff"); A("s_mov_b32 s41, 0")
    A("s_mov_b32 s42, 0xffffffff"); A("s_mov_b32 s43, 0")
    A("s_mov_b32 s46, 0x3e64f92e")
    A("s_mov_b32 s47, 0x3fb8aa3b")
    PM = TT + 13
    A("v_mov_b32 v%d, 0x0000ffff", PM)
    A("v_mov_b32 v%d, 0xffff0000", TT + 14)
    A("v_cndmask_b32 v%d, v%d, v%d, s[32:33]", PM, PM, TT + 14)
    SR = ACC
    for a in range(2):
        for hh in range(2):
            u = a * 2 + hh
            qa = QP + a * 6 + 2 * hh
            for d in range(2):
                if hh == 0:
                    A("v_mov_b32 v%d, v%d", QF + u * 4 + d, qa + d)
                    A("v_cndmask_b32 v%d, 0, v%d, s[40:41]", QF + u * 4 + 2 + d, qa + 2 + d)
                else:
                    A("v_cndmask_b32 v%d, 0, v%d, s[34:35]", QF + u * 4 + d, qa + d)
                    A("v_cndmask_b32 v%d, 0, v%d, s[42:43]", QF + u * 4 + 2 + d, qa + 2 + d)
    A("s_waitcnt lgkmcnt(0)")
    A.nop(2)
    for a in range(2):
        for hh in range(2):
            u = a * 2 + hh
            q = "v[%d:%d]" % (QF + u * 4, QF + u * 4 + 3)
            kp = KP + a * 6 + 2 * hh
            kc = KP + (a + 1) * 6 + 2 * hh
            bp = BP0 if a == 0 else BP
            A("v_mfma_f32_16x16x32_bf16 v[%d:%d], v[%d:%d], %s, v[%d:%d]", SR + u * 8, SR + u * 8 + 3, kp, kp + 3, q, bp, bp + 3)
            A("v_mfma_f32_16x16x32_bf16 v[%d:%d], v[%d:%d], %s, v[%d:%d]", SR + u * 8 + 4, SR + u * 8 + 7, kc, kc + 3, q, BC, BC + 3)
    A.nop(12)
    PF = QF
    lists = []
    for u in range(4):
        S = SR + u * 8
        c = [S, S + 2, S + 4, S + 6]
        m, t1 = S + 1, S + 3
        L = []
        for i in range(4): L.append("v_cndmask_b32 v%d, v%d, v%d, s[32:33]" % (c[i], c[i], c[i] + 1))
        for i in range(4): L.append("v_cvt_pk_bf16_f32 v%d, 0, v%d" % (c[i], c[i]))
        for i in range(4): L.append("v_mul_f32 v%d, s46, v%d" % (c[i], c[i]))
        for i in range(4): L.append("v_cvt_pk_bf16_f32 v%d, 0, v%d" % (c[i], c[i]))
        L.append("v_max3_f32 v%d, v%d, v%d, v%d" % (m, c[0], c[1], c[2]))
        L.append("v_max_f32 v%d, v%d, v%d" % (m, m, c[3]))
        for sw in ("v_permlane16_swap_b32", "v_permlane32_swap_b32"):
            L.append("v_mov_b32 v%d, v%d" % (t1, m))
            L.append("s_nop 0")
            L.append("%s v%d, v%d" % (sw, m, t1))
            L.append("s_nop 0")
            L.append("v_max_f32 v%d, v%d, v%d" % (m, m, t1))
        for i in range(4): L.append("v_sub_f32 v%d, v%d, v%d" % (c[i], c[i], m))
        for i in range(4): L.append("v_mul_f32 v%d, s47, v%d" % (c[i], c[i]))
        for i in range(4): L.append("v_exp_f32 v%d, v%d" % (c[i], c[i]))
        L.append("v_add_f32 v%d, v%d, v%d" % (m, c[0], c[1]))
        L.append("v_add_f32 v%d, v%d, v%d" % (t1, c[2], c[3]))
        L.append("v_add_f32 v%d, v%d, v%d" % (m, m, t1))
        for sw in ("v_permlane16_swap_b32", "v_permlane32_swap_b32"):
            L.append("v_mov_b32 v%d, v%d" % (t1, m))
            L.append("s_nop 0")
            L.append("%s v%d, v%d" % (sw, m, t1))
            L.append("s_nop 0")
            L.append("v_add_f32 v%d, v%d, v%d" % (m, m, t1))
        L.append("v_rcp_f32 v%d, v%d" % (m, m))
        L.append("s_nop 0")
        for i in range(4): L.append("v_mul_f32 v%d, v%d, v%d" % (c[i], c[i], m))
        for i in range(4): L.append("v_cvt_pk_bf16_f32 v%d, v%d, v%d" % (c[i], c[i], c[i]))
        for i in range(4): L.append("v_and_b32 v%d, v%d, v%d" % (PF + u * 4 + i, c[i], PM))
        lists.append(L)
    interleave(A, lists)
    A.nop(2)
    for a in range(2):
        for hh in range(2):
            u = a * 2 + hh
            p = "v[%d:%d]" % (PF + u * 4, PF + u * 4 + 3)
            va = VP + hh * 6 + 2 * a
            vb = VP + (hh + 1) * 6 + 2 * a
            A("v_mfma_f32_16x16x32_bf16 v[%d:%d], v[%d:%d], %s, 0", SR + u * 8, SR + u * 8 + 3, va, va + 3, p)
            A("v_mfma_f32_16x16x32_bf16 v[%d:%d], v[%d:%d], %s, 0", SR + u * 8 + 4, SR + u * 8 + 7, vb, vb + 3, p)
    ADR = TT
    A("s_mul_i32 s%d, s%d, 20", S_TMP, S_CG)
    A("s_mul_i32 s%d, s%d, 10", S_TMP2, S_HF)
    A("s_add_u32 s%d, s%d, s%d", S_TMP, S_TMP, S_TMP2)
    A("v_and_b32 v%d, 15, v%d", TT + 8, V_LANE)
    A("v_lshlrev_b32 v%d, 4, v%d", TT + 8, TT + 8)
    for T in range(3):
        G = TT + 4
        A("v_add_u32 v%d, s%d, v%d", G, S_TMP, g4)
        A("v_add_u32 v%d, %d, v%d", G, 4 * T, G)
        A("v_lshrrev_b32 v%d, 3, v%d", TT + 5, G)
        A("v_lshl_add_u32 v%d, v%d, 12, v%d", ADR + T, TT + 5, TT + 8)
        A("v_and_b32 v%d, 3, v%d", TT + 5, G)
        A("v_lshl_add_u32 v%d, v%d, 8, v%d", ADR + T, TT + 5, ADR + T)
        A("v_bfe_u32 v%d, v%d, 2, 1", TT + 5, G)
        A("v_lshl_add_u32 v%d, v%d, 3, v%d", ADR + T, TT + 5, ADR + T)
    A.nop(8)
    for u in range(4):
        for hb in range(2):
            o = SR + u * 8 + 4 * hb
            A("v_cvt_pk_bf16_f32 v%d, v%d, v%d", o, o, o + 1)
            A("v_cvt_pk_bf16_f32 v%d, v%d, v%d", o + 1, o + 2, o + 3)
    for a in range(2):
        tile_base(A, 48, a)
        uA, uB = a * 2, a * 2 + 1
        src = SR + uA * 8
        A("buffer_store_dwordx2 v[%d:%d], v%d, s[%d:%d], s48 offen", src, src + 1, ADR, S_ACT, S_ACT + 3)
        lo, hi = SR + uA * 8 + 4, SR + uB * 8
        for d in range(2):
            A("v_cndmask_b32 v%d, v%d, v%d, s[40:41]", hi + d, hi + d, lo + d)
        A("buffer_store_dwordx2 v[%d:%d], v%d, s[%d:%d], s48 offen", hi, hi + 1, ADR + 1, S_ACT, S_ACT + 3)
        src = SR + uB * 8 + 4
        A("s_mov_b32 exec_hi, 0")
        A("buffer_store_dwordx2 v[%d:%d], v%d, s[%d:%d], s48 offen", src, src + 1, ADR + 2, S_ACT, S_ACT + 3)
        A("s_mov_b32 exec_hi, -1")

def r_type(A):
    t = [ACC + i for i in range(8)]
    VD, VT = 8, 16
    A("v_and_b32 v%d, 63, v%d", V_LANE, V_TID)
    A("v_lshlrev_b32 v%d, 4, v%d", V_L16, V_LANE)
    A("s_mul_i32 s%d, s%d, 320", S_TMP, S_WAVE)
    for i in range(5):
        A("v_add_u32 v%d, s%d, v%d", t[0], S_TMP, V_LANE)
        A("v_add_u32 v%d, %d, v%d", t[0], 64 * i, t[0])
        A("v_mul_u32_u24 v%d, 3277, v%d", t[1], t[0])
        A("v_lshrrev_b32 v%d, 18, v%d", t[1], t[1])
        A("v_mul_u32_u24 v%d, 80, v%d", t[2], t[1])
        A("v_sub_u32 v%d, v%d, v%d", t[0], t[0], t[2])
        A("v_and_b32 v%d, 7, v%d", t[2], t[1])
        A("v_lshlrev_b32 v%d, 1, v%d", t[2], t[2])
        A("v_xor_b32 v%d, v%d, v%d", t[0], t[0], t[2])
        A("v_mul_u32_u24 v%d, 1280, v%d", t[1], t[1])
        A("v_lshl_add_u32 v%d, v%d, 4, v%d", VD + i, t[0], t[1])
    A("v_lshrrev_b32 v%d, 4, v%d", t[0], V_LANE)
    A("v_bfe_u32 v%d, v%d, 2, 2", t[1], V_LANE)
    A("v_and_b32 v%d, 1, v%d", t[2], t[0])
    A("v_lshl_add_u32 v%d, v%d, 2, v%d", t[2], t[2], t[1])
    A("v_lshl_add_u32 v%d, v%d, 2, v%d", t[3], t[0], t[1])
    A("v_mul_u32_u24 v%d, 1280, v%d", t[3], t[3])
    A("v_and_b32 v%d, 3, v%d", t[4], V_LANE)
    A("v_lshl_add_u32 v%d, v%d, 3, v%d", t[3], t[4], t[3])
    for i in range(5):
        A("s_mul_i32 s%d, s%d, 5", S_TMP, S_WAVE)
        A("s_add_u32 s%d, s%d, %d", S_TMP, S_TMP, i)
        A("s_and_b32 s%d, s%d, 7", S_TMP2, S_TMP)
        A("v_xor_b32 v%d, s%d, v%d", t[4], S_TMP2, t[2])
        A("v_lshl_add_u32 v%d, v%d, 5, v%d", t[4], t[4], t[3])
        A("s_lshr_b32 s%d, s%d, 3", S_TMP2, S_TMP)
        A("s_lshl_b32 s%d, s%d, 8", S_TMP2, S_TMP2)
        A("v_add_u32 v%d, s%d, v%d", VT + i, S_TMP2, t[4])
        A("v_add_u32 v%d, 0x%x, v%d", VT + 5 + i, 81920, VT + i)
    A("s_mul_i32 s%d, s%d, 5120", S_LDSW, S_WAVE)
    A("s_mov_b32 s62, 0x%x", 640 * 1280)
    A("s_mov_b32 s63, 0x%x", 1728 * 1280)
    for j in range(4):
        A("s_add_u32 s%d, s%d, %d", 72 + j, S_CG, 16 * j)
    A("s_add_u32 s76, s%d, 64", S_CG)
    A("s_cmp_lt_u32 s76, 74")
    A("s_cselect_b32 s76, s76, s75")
    def dma(j, buf):
        A("s_cmp_lt_u32 s%d, 20", 72 + j)
        A("s_cselect_b32 s8, s54, s58")
        A("s_cselect_b32 s9, s55, s59")
        A("s_cselect_b32 s10, s62, s63")
        A("s_cselect_b32 s52, 0, 20")
        A("s_and_b32 s9, s9, 0xffff")
        A("s_mov_b32 s11, 0x00020000")
        A("s_sub_u32 s51, s%d, s52", 72 + j)
        A("s_mul_i32 s51, s51, %d", 32 * 1280)
        for i in range(5):
            A("s_add_u32 m0, s%d, %d", S_LDSW, buf * 40960 + i * 1024)
            A("s_nop 0")
            A("buffer_load_dwordx4 v%d, s[8:11], s51 offen lds", VD + i)
    for j in range(4): dma(j, j)
    waits = [15, 20, 20, 20, 15]
    for j in range(5):
        buf = j % 4
        A("s_waitcnt vmcnt(%d)", waits[j])
        A("s_barrier")
        R0 = 64 + 20 * (j & 1)
        for i in range(5):
            A("ds_read_b64_tr_b16 v[%d:%d], v%d offset:%d", R0 + 4 * i, R0 + 4 * i + 1, VT + i + 5 * (buf >> 1), (buf & 1) * 40960)
            A("ds_read_b64_tr_b16 v[%d:%d], v%d offset:%d", R0 + 4 * i + 2, R0 + 4 * i + 3, VT + i + 5 * (buf >> 1), (buf & 1) * 40960 + 20480)
        A("s_waitcnt lgkmcnt(0)")
        A("s_mul_i32 s%d, s%d, 74", S_TMP, S_WAVE)
        A("s_add_u32 s%d, s%d, s%d", S_TMP, S_TMP, 72 + j)
        A("s_mul_i32 s%d, s%d, 5120", S_TMP, S_TMP)
        for i in range(5):
            if i == 4:
                A("s_add_u32 s%d, s%d, 4096", S_TMP, S_TMP)
            A("buffer_store_dwordx4 v[%d:%d], v%d, s[%d:%d], s%d offen offset:%d", R0 + 4 * i, R0 + 4 * i + 3, V_L16, S_ACT, S_ACT + 3, S_TMP, (i % 4) * 1024)
        if j == 0:
            A("s_barrier")
            dma(4, 0)

def gen_k1(name):
    A = Asm()
    A("s_cmp_ge_u32 s2, 256")
    A("s_cbranch_scc1 L_k1_end")
    A("s_load_dwordx2 s[50:51], s[0:1], 0")
    A("s_load_dwordx4 s[52:55], s[0:1], 8")
    A("s_load_dwordx4 s[56:59], s[0:1], 32")
    A("s_load_dwordx2 s[60:61], s[0:1], 64")
    A("v_lshrrev_b32 v1, 6, v0")
    A("s_nop 0")
    A("v_readfirstlane_b32 s%d, v1", S_WAVE)
    A("s_and_b32 s3, s2, 7")
    A("s_lshr_b32 s4, s2, 3")
    A("s_and_b32 s5, s3, 1")
    A("s_lshr_b32 s6, s3, 1")
    A("s_waitcnt lgkmcnt(0)")
    A("s_cmp_ge_u32 s4, 30")
    A("s_cbranch_scc1 L_k1_r")
    srd(A, S_X, 50, 51, 2048 * 1280)
    srd(A, S_ACT, 60, 61, ACT_BYTES, WS_ACT)
    stamp_init(A, 1, 60, 61, S_WAVE, 3)
    stamp(A, 0, 3)
    A("s_cmp_ge_u32 s4, 16")
    A("s_cbranch_scc1 L_k1_h")
    for typ in ('Q', 'H'):
        if typ == 'Q':
            A("s_lshr_b32 s7, s4, 3")
            A("s_lshl_b32 s%d, s6, 1", S_CG)
            A("s_add_u32 s%d, s%d, s7", S_CG, S_CG)
            A("s_and_b32 s7, s4, 7")
            A("s_lshl_b32 s%d, s5, 3", S_RB)
            A("s_add_u32 s%d, s%d, s7", S_RB, S_RB)
            srd(A, S_W, 52, 53, 640 * 3840)
        else:
            A.label("L_k1_h")
            A("s_mul_i32 s7, s6, 14")
            A("s_add_u32 s7, s7, s4")
            A("s_sub_u32 s7, s7, 16")
            A("s_lshr_b32 s%d, s7, 3", S_CG)
            A("s_and_b32 s7, s7, 7")
            A("s_lshl_b32 s%d, s5, 3", S_RB)
            A("s_add_u32 s%d, s%d, s7", S_RB, S_RB)
            A("s_lshl_b32 s%d, s%d, 9", S_CG, S_CG)
            A("s_min_u32 s%d, s%d, 2944", S_CG, S_CG)
            srd(A, S_W, 56, 57, 640 * 3456)
        A("s_mov_b32 s%d, 0", S_WK)
        A("v_and_b32 v%d, 63, v%d", V_LANE, V_TID)
        ln_phase(A, typ)
        stamp(A, 1, 3)
        main_loop(A, typ)
        stamp(A, 2, 3)
        if typ == 'Q': q_epilogue(A)
        else: h_epilogue(A)
        stamp(A, 3, 3)
        A("s_endpgm")
    A.label("L_k1_r")
    A("s_lshl_b32 s%d, s3, 1", S_CG)
    A("s_add_u32 s%d, s%d, s4", S_CG, S_CG)
    A("s_sub_u32 s%d, s%d, 30", S_CG, S_CG)
    srd(A, S_ACT, 60, 61, WF_BYTES, WS_WF)
    r_type(A)
    A.label("L_k1_end")
    A("s_endpgm")
    return khead(name) + A.text() + kdesc(name, 256, 96, VTOT)
```

```python
from core import *
D = 4
def gen_k2(name):
    A = Asm()
    A("s_cmp_ge_u32 s2, 256")
    A("s_cbranch_scc1 L_k2_end")
    A("s_load_dwordx2 s[4:5], s[0:1], 0")
    A("s_load_dwordx2 s[6:7], s[0:1], 48")
    A("s_load_dwordx2 s[60:61], s[0:1], 64")
    A("v_lshrrev_b32 v1, 6, v0")
    A("s_nop 0")
    A("v_readfirstlane_b32 s20, v1")
    A("v_and_b32 v1, 63, v0")
    A("v_lshlrev_b32 v2, 4, v1")
    A("v_add_u32 v3, 4096, v2")
    A("s_and_b32 s3, s2, 7")
    A("s_lshr_b32 s21, s2, 3")
    A("s_lshr_b32 s22, s3, 1")
    A("s_lshl_b32 s22, s22, 3")
    A("s_and_b32 s23, s21, 7")
    A("s_add_u32 s22, s22, s23")
    A("s_and_b32 s23, s3, 1")
    A("s_lshl_b32 s23, s23, 2")
    A("s_lshr_b32 s24, s21, 3")
    A("s_add_u32 s23, s23, s24")
    A("s_mul_i32 s24, s20, 9")
    A("s_add_u32 s24, s24, 2")
    A("s_mul_i32 s25, s20, 10")
    A("s_cmp_lt_u32 s20, 2")
    A("s_cselect_b32 s24, s25, s24")
    A("s_mul_i32 s25, s22, 74")
    A("s_add_u32 s25, s25, s24")
    A("s_lshl_b32 s25, s25, 12")
    A("s_mul_i32 s26, s23, 74")
    A("s_add_u32 s26, s26, s24")
    A("s_mul_i32 s26, s26, 5120")
    A("s_waitcnt lgkmcnt(0)")
    srd(A, 8, 60, 61, ACT_BYTES, WS_ACT)
    srd(A, 12, 60, 61, WF_BYTES, WS_WF)
    srd(A, 16, 4, 5, 2048 * 1280)
    srd(A, 28, 6, 7, 2048 * 1280)
    stamp_init(A, 2, 60, 61, 20, 4)
    stamp(A, 0, 4)
    FR = 32
    def issue(st):
        b = FR + (st % D) * 36
        for t in range(4):
            A("buffer_load_dwordx4 v[%d:%d], v2, s[8:11], s25 offen offset:%d", b + 4 * t, b + 4 * t + 3, 1024 * t)
        for n in range(4):
            A("buffer_load_dwordx4 v[%d:%d], v2, s[12:15], s26 offen offset:%d", b + 16 + 4 * n, b + 16 + 4 * n + 3, 1024 * n)
        A("buffer_load_dwordx4 v[%d:%d], v3, s[12:15], s26 offen", b + 32, b + 35)
        A("s_add_u32 s25, s25, 4096")
        A("s_add_u32 s26, s26, 5120")
    VX, VG, VL = 8, 14, 17
    def xloads():
        A("s_mul_i32 s27, s22, %d", 64 * 1280)
        A("s_mul_i32 s32, s23, 160")
        A("s_add_u32 s27, s27, s32")
        for i in range(3):
            A("v_add_u32 v4, %d, v0", 512 * i)
            if i == 2:
                A("v_min_u32 v4, 1279, v4")
            A("v_mul_u32_u24 v5, 3277, v4")
            A("v_lshrrev_b32 v5, 16, v5")
            A("v_mul_u32_u24 v6, 20, v5")
            A("v_sub_u32 v6, v4, v6")
            A("v_mul_u32_u24 v7, 1280, v5")
            A("v_lshl_add_u32 v7, v6, 3, v7")
            A("v_add_u32 v%d, s27, v7", VG + i)
            A("v_mul_u32_u24 v7, 320, v5")
            A("v_lshl_add_u32 v%d, v6, 4, v7", VL + i)
            A("buffer_load_dwordx2 v[%d:%d], v%d, s[16:19], 0 offen", VX + 2 * i, VX + 2 * i + 1, VG + i)
    def body(n):
        for st in range(min(D, n)):
            issue(st)
        xloads()
        for st in range(n):
            issued = min(st + D - 1, n - 1)
            extra = 3 if st < D else 0
            A("s_waitcnt vmcnt(%d)", (issued - st) * 9 + (3 if st + 0 <= D - 1 else 0))
            if st == 0: stamp(A, 1, 4)
            b = FR + (st % D) * 36
            for nt in range(5):
                for tt in range(4):
                    acc = (nt * 4 + tt) * 4
                    C = "a[%d:%d]" % (acc, acc + 3)
                    A("v_mfma_f32_16x16x32_bf16 %s, v[%d:%d], v[%d:%d], %s", C, b + 16 + 4 * nt, b + 16 + 4 * nt + 3, b + 4 * tt, b + 4 * tt + 3, C if st > 0 else "0")
            if st + D < n:
                issue(st + D)
    A("s_cmp_lt_u32 s20, 2")
    A("s_cbranch_scc0 L_k2_w9")
    body(10)
    A("s_branch L_k2_epi")
    A.label("L_k2_w9")
    body(9)
    A.label("L_k2_epi")
    stamp(A, 2, 4)
    A.nop(16)
    A("v_and_b32 v4, 15, v1")
    A("v_mul_u32_u24 v4, 320, v4")
    A("v_lshrrev_b32 v5, 4, v1")
    A("v_lshl_add_u32 v4, v5, 4, v4")
    A("s_mul_i32 s32, s20, 20480")
    A("v_add_u32 v4, s32, v4")
    for nt in range(5):
        for tt in range(4):
            acc = (nt * 4 + tt) * 4
            A("ds_write_b128 v4, a[%d:%d] offset:%d", acc, acc + 3, tt * 16 * 320 + nt * 64)
    A("s_waitcnt vmcnt(0) lgkmcnt(0)")
    A("s_barrier")
    B = 32
    for i in range(3):
        A("v_add_u32 v7, 0x%x, v%d", 4 * 20480, VL + i)
        for w in range(8):
            A("ds_read_b128 v[%d:%d], v%d offset:%d", B + i * 32 + 4 * w, B + i * 32 + 4 * w + 3, (VL + i) if w < 4 else 7, (w % 4) * 20480)
    A("s_waitcnt lgkmcnt(0)")
    for i in range(3):
        s = B + i * 32
        t = 140
        for r in range(4):
            A("v_add_f32 v%d, v%d, v%d", s + r, s + r, s + 4 + r)
            A("v_add_f32 v%d, v%d, v%d", s + 8 + r, s + 8 + r, s + 12 + r)
            A("v_add_f32 v%d, v%d, v%d", s + 16 + r, s + 16 + r, s + 20 + r)
            A("v_add_f32 v%d, v%d, v%d", s + 24 + r, s + 24 + r, s + 28 + r)
        for r in range(4):
            A("v_add_f32 v%d, v%d, v%d", s + 8 + r, s + 8 + r, s + 16 + r)
        for r in range(4):
            A("v_add_f32 v%d, v%d, v%d", s + 4 + r, s + 8 + r, s + 24 + r)
        for r in range(4):
            A("v_cvt_pk_bf16_f32 v%d, 0, v%d", s + 4 + r, s + 4 + r)
            A("v_cvt_pk_bf16_f32 v%d, 0, v%d", s + r, s + r)
        for r in range(4): A("v_mul_f32 v%d, 0xbfb8aa3b, v%d", t + r, s + 4 + r)
        for r in range(4): A("v_exp_f32 v%d, v%d", t + r, t + r)
        for r in range(4): A("v_add_f32 v%d, 1.0, v%d", t + r, t + r)
        for r in range(4): A("v_rcp_f32 v%d, v%d", t + r, t + r)
        for r in range(4): A("v_mul_f32 v%d, v%d, v%d", s + 4 + r, s + 4 + r, t + r)
        for r in range(4): A("v_cvt_pk_bf16_f32 v%d, 0, v%d", s + 4 + r, s + 4 + r)
        for r in range(4): A("v_mul_f32 v%d, v%d, v%d", s + r, s + r, s + 4 + r)
        for r in range(4): A("v_cvt_pk_bf16_f32 v%d, 0, v%d", s + r, s + r)
        A("v_lshlrev_b32 v%d, 16, v%d", t, VX + 2 * i)
        A("v_and_b32 v%d, 0xffff0000, v%d", t + 1, VX + 2 * i)
        A("v_lshlrev_b32 v%d, 16, v%d", t + 2, VX + 2 * i + 1)
        A("v_and_b32 v%d, 0xffff0000, v%d", t + 3, VX + 2 * i + 1)
        for r in range(4): A("v_add_f32 v%d, v%d, v%d", s + r, s + r, t + r)
        A("v_cvt_pk_bf16_f32 v%d, v%d, v%d", s + 4, s, s + 1)
        A("v_cvt_pk_bf16_f32 v%d, v%d, v%d", s + 5, s + 2, s + 3)
        if i == 2:
            A("v_cmp_gt_u32 vcc, 256, v0")
            A("s_and_saveexec_b64 s[34:35], vcc")
            A("s_cbranch_execz L_k2_skip")
        A("buffer_store_dwordx2 v[%d:%d], v%d, s[28:31], 0 offen", s + 4, s + 5, VG + i)
    A.label("L_k2_skip")
    stamp(A, 3, 4)
    A.label("L_k2_end")
    A("s_endpgm")
    return khead(name) + A.text() + kdesc(name, 256, 96, 176)
```

```python
import sys
from core import *
import k1v2, k2v2
NAME = "recurrent_scan__sliding_local_dilated__dense_activation_silu__prompt"
hdr = open("cdna_kernels/%s.s.ref" % NAME).read().split("; Override launch geometry")[0]
out = hdr
out += "; @launch kernel=rs_g1_kernel grid=(256,1,1) block=(512,1,1) lds=163840\n"
out += "; @launch kernel=rs_g2_kernel grid=(256,1,1) block=(512,1,1) lds=163840\n"
out += '.amdgcn_target "amdgcn-amd-amdhsa--gfx950"\n'
out += k1v2.gen_k1("rs_g1_kernel")
out += k2v2.gen_k2("rs_g2_kernel")
dst = sys.argv[1] if len(sys.argv) > 1 else "cdna_kernels/%s.s" % NAME
open(dst, "w").write(out)
print("wrote", dst, len(out))
```

```python
from core import *

RW = 5
WSLOT = 16384
RWH = int(__import__('os').environ.get('RWH', '5'))
def set_type(typ):
    global RW, XBASE
    RW = 5 if typ == 'Q' else RWH
    XBASE = RW * WSLOT
XBASE = RW * WSLOT
NKS = 20
AHEAD = 4
NB = 6

S_W, S_X, S_ACT = 8, 12, 16
S_WAVE, S_TP, S_HF, S_WK, S_RB, S_CG, S_TMP, S_TMP2, S_LDSW = 20, 21, 22, 23, 24, 25, 26, 27, 28
S_XM = 64
V_TID, V_LANE = 0, 1
V_L16 = 2
V_DMA = 8
V_TR = 10
V_XR, V_XRH, V_XWH = 32, 33, 34
V_XW = 4
V_ST = 2
XRES = 36
ACC = 128
VTOT = 208
A_WF = 0
A_XF = 24

class LQ:
    def __init__(self, A):
        self.A = A; self.n = 0
    def op(self, s, *a):
        self.A(s, *a); self.n += 1
        return self.n - 1
    def wait(self, seq):
        k = self.n - 1 - seq
        self.A("s_waitcnt lgkmcnt(%d)", min(max(k, 0), 15))

def xslot(typ): return 9280 if typ == 'Q' else (8256 if RWH == 5 else 8192)
def nfr(typ): return 11 if typ == 'Q' else 8

def setup(A, typ):
    t = [ACC + i for i in range(12)]
    A("v_and_b32 v%d, 63, v%d", V_LANE, V_TID)
    A("v_lshlrev_b32 v%d, 4, v%d", V_L16, V_LANE)
    A("s_and_b32 s%d, s%d, 3", S_TP, S_WAVE)
    A("s_lshr_b32 s%d, s%d, 2", S_HF, S_WAVE)
    A("s_lshl_b32 s%d, s%d, 11", S_LDSW, S_WAVE)
    pitch = 3840 if typ == 'Q' else 3456
    A("v_lshrrev_b32 v%d, 5, v%d", t[0], V_LANE)
    A("v_and_b32 v%d, 31, v%d", t[1], V_LANE)
    for i in range(2):
        A("s_lshl_b32 s%d, s%d, 2", S_TMP, S_WAVE)
        A("v_add_u32 v%d, s%d, v%d", t[2], S_TMP, t[0])
        A("v_add_u32 v%d, %d, v%d", t[2], 2 * i, t[2])
        A("v_and_b32 v%d, 7, v%d", t[3], t[2])
        A("v_lshlrev_b32 v%d, 1, v%d", t[3], t[3])
        A("v_xor_b32 v%d, v%d, v%d", t[3], t[3], t[1])
        A("v_and_b32 v%d, 0x13, v%d", t[4], t[2])
        A("v_and_b32 v%d, 4, v%d", t[5], t[2])
        A("v_lshl_or_b32 v%d, v%d, 1, v%d", t[4], t[5], t[4])
        A("v_and_b32 v%d, 8, v%d", t[5], t[2])
        A("v_lshrrev_b32 v%d, 1, v%d", t[5], t[5])
        A("v_or_b32 v%d, v%d, v%d", t[4], t[4], t[5])
        A("s_movk_i32 s%d, %d", S_TMP, pitch)
        A("v_mul_lo_u32 v%d, v%d, s%d", t[4], t[4], S_TMP)
        if typ == 'Q':
            A("v_min_u32 v%d, 29, v%d", t[3], t[3])
            A("v_mul_u32_u24 v%d, 26, v%d", t[5], t[3])
            A("v_lshrrev_b32 v%d, 8, v%d", t[5], t[5])
            A("v_mul_u32_u24 v%d, 1120, v%d", t[5], t[5])
            A("v_add_u32 v%d, v%d, v%d", t[4], t[4], t[5])
            A("v_lshl_add_u32 v%d, v%d, 4, v%d", t[4], t[3], t[4])
            A("s_mul_i32 s%d, s%d, 160", S_TMP, S_CG)
            A("v_add_u32 v%d, s%d, v%d", V_DMA + i, S_TMP, t[4])
        else:
            A("v_lshl_add_u32 v%d, v%d, 4, v%d", t[4], t[3], t[4])
            A("v_add_u32 v%d, s%d, v%d", V_DMA + i, S_CG, t[4])
    A("v_lshrrev_b32 v%d, 4, v%d", t[0], V_LANE)
    A("v_bfe_u32 v%d, v%d, 2, 2", t[1], V_LANE)
    A("v_and_b32 v%d, 1, v%d", t[2], t[0])
    A("v_lshl_add_u32 v%d, v%d, 2, v%d", t[2], t[2], t[1])
    A("v_lshlrev_b32 v%d, 1, v%d", t[2], t[2])
    A("v_lshrrev_b32 v%d, 1, v%d", t[3], t[0])
    A("v_lshlrev_b32 v%d, 4, v%d", t[3], t[3])
    A("v_lshrrev_b32 v%d, 1, v%d", t[4], t[2])
    A("v_add_u32 v%d, v%d, v%d", t[3], t[3], t[4])
    A("v_lshlrev_b32 v%d, 9, v%d", t[3], t[3])
    A("v_and_b32 v%d, 3, v%d", t[4], V_LANE)
    A("v_lshlrev_b32 v%d, 3, v%d", t[4], t[4])
    def tr_addr(dst, s_b0):
        A("v_add_u32 v%d, s%d, v%d", t[5], s_b0, t[4])
        A("v_lshrrev_b32 v%d, 4, v%d", t[6], t[5])
        A("v_xor_b32 v%d, v%d, v%d", t[6], t[6], t[2])
        A("v_and_b32 v%d, 8, v%d", t[5], t[5])
        A("v_lshl_add_u32 v%d, v%d, 4, v%d", t[5], t[6], t[5])
        A("v_add_u32 v%d, v%d, v%d", dst, t[5], t[3])
        A("v_add_u32 v%d, 0x%x, v%d", dst + 11, 4 * WSLOT, dst)
    if typ == 'Q':
        for f in range(9):
            A("s_mul_i32 s%d, s%d, 80", S_TMP, S_HF)
            A("s_add_u32 s%d, s%d, %d", S_TMP, S_TMP, (f // 3) * 160 + 32 * (f % 3))
            tr_addr(V_TR + f, S_TMP)
        for hh in range(2):
            A("s_min_u32 s%d, s%d, 2", S_TMP2, S_TP)
            A("s_lshl_b32 s%d, s%d, 5", S_TMP2, S_TMP2)
            A("s_mul_i32 s%d, s%d, 80", S_TMP, S_HF)
            A("s_add_u32 s%d, s%d, s%d", S_TMP, S_TMP, S_TMP2)
            A("s_add_u32 s%d, s%d, %d", S_TMP, S_TMP, 160 * (hh + 1))
            tr_addr(V_TR + 9 + hh, S_TMP)
    else:
        for f in range(8):
            A("s_lshl_b32 s%d, s%d, 8", S_TMP, S_HF)
            A("s_add_u32 s%d, s%d, %d", S_TMP, S_TMP, 32 * f)
            tr_addr(V_TR + f, S_TMP)
    fo = 1 if typ == 'Q' else 0
    A("v_and_b32 v%d, 15, v%d", t[0], V_LANE)
    A("v_lshrrev_b32 v%d, 4, v%d", t[1], V_LANE)
    A("v_lshrrev_b32 v%d, 2, v%d", t[2], t[0])
    A("v_sub_u32 v%d, 4, v%d", t[2], t[2])
    A("v_and_b32 v%d, 3, v%d", t[2], t[2])
    A("v_xor_b32 v%d, v%d, v%d", t[1], t[1], t[2])
    A("v_lshlrev_b32 v%d, 6, v%d", t[0], t[0])
    A("v_lshl_add_u32 v%d, v%d, 4, v%d", t[0], t[1], t[0])
    A("v_add_u32 v%d, 0x%x, v%d", V_XRH, XBASE, t[0])
    A("s_lshl_b32 s%d, s%d, 11", S_TMP, S_TP)
    A("s_add_u32 s%d, s%d, %d", S_TMP, S_TMP, fo * 1024)
    A("v_add_u32 v%d, s%d, v%d", V_XR, S_TMP, V_XRH)
    A("v_add_u32 v%d, %d, v%d", 35, 4 * xslot(typ), V_XR)
    A("v_lshrrev_b32 v%d, 4, v%d", t[0], V_LANE)
    A("v_lshlrev_b32 v%d, 6, v%d", t[0], t[0])
    A("v_bfe_u32 v%d, v%d, 2, 2", t[1], V_LANE)
    A("v_mul_u32_u24 v%d, %d, v%d", t[1], xslot(typ), t[1])
    A("v_add_u32 v%d, v%d, v%d", t[0], t[0], t[1])
    A("s_lshl_b32 s%d, s%d, 10", S_TMP, S_WAVE)
    A("s_add_u32 s%d, s%d, 0x%x", S_TMP, S_TMP, XBASE + fo * 1024)
    A("v_add_u32 v%d, s%d, v%d", t[0], S_TMP, t[0])
    A("v_and_b32 v%d, 3, v%d", t[1], V_LANE)
    for i4 in range(4):
        A("v_xor_b32 v%d, %d, v%d", t[2], (4 - i4) & 3, t[1])
        A("v_lshl_add_u32 v%d, v%d, 4, v%d", V_XW + i4, t[2], t[0])
        A("v_add_u32 v%d, %d, v%d", V_XW + i4, i4 * 256, V_XW + i4)
    if typ == 'Q':
        A("v_lshrrev_b32 v%d, 5, v%d", t[0], V_LANE)
        A("s_lshl_b32 s%d, s%d, 1", S_TMP, S_WAVE)
        A("v_add_u32 v%d, s%d, v%d", t[0], S_TMP, t[0])
        A("v_lshlrev_b32 v%d, 6, v%d", t[0], t[0])
        A("v_bfe_u32 v%d, v%d, 2, 2", t[2], V_LANE)
        A("v_mul_u32_u24 v%d, %d, v%d", t[2], xslot(typ), t[2])
        A("v_add_u32 v%d, v%d, v%d", t[0], t[0], t[2])
        A("s_lshr_b32 s%d, s%d, 1", S_TMP, S_WAVE)
        A("s_sub_u32 s%d, 4, s%d", S_TMP, S_TMP)
        A("s_and_b32 s%d, s%d, 3", S_TMP, S_TMP)
        A("v_xor_b32 v%d, s%d, v%d", t[2], S_TMP, t[1])
        A("v_lshl_add_u32 v%d, v%d, 4, v%d", t[0], t[2], t[0])
        A("v_add_u32 v%d, 0x%x, v%d", V_XWH, XBASE, t[0])
    for q in range(4):
        m = 0x000F000F << (4 * q)
        A("s_mov_b32 s%d, 0x%x", S_XM + 2 * q, m)
        A("s_mov_b32 s%d, 0x%x", S_XM + 2 * q + 1, m)

def issue_w(A, typ, s, only=None):
    slot = s % RW
    pitch = 3840 if typ == 'Q' else 3456
    for i in range(2):
        if only is not None and i != only: continue
        A("s_add_u32 m0, s%d, 0x%x", S_LDSW, slot * WSLOT + i * 1024)
        A("s_nop 0")
        A("buffer_load_dwordx4 v%d, s[%d:%d], s%d offen lds", V_DMA + i, S_W, S_W + 3, S_WK)
    if only is None or only == 1:
        A("s_add_u32 s%d, s%d, %d", S_WK, S_WK, 32 * pitch)

def ln_addr(A, typ):
    t0, t1, t2 = ACC + 76, ACC + 77, ACC + 78
    A("s_lshl_b32 s%d, s%d, 3", S_TMP, S_RB)
    A("s_add_u32 s%d, s%d, s%d", S_TMP, S_TMP, S_WAVE)
    A("s_mul_i32 s%d, s%d, %d", S_TMP, S_TMP, 16 * 1280)
    A("v_lshrrev_b32 v%d, 4, v%d", t0, V_LANE)
    A("v_mul_u32_u24 v%d, 1280, v%d", t0, t0)
    A("v_and_b32 v%d, 15, v%d", t1, V_LANE)
    A("v_lshl_add_u32 v%d, v%d, 4, v%d", t0, t1, t0)
    A("v_add_u32 v%d, s%d, v%d", t0, S_TMP, t0)
    if typ == 'Q':
        A("s_lshl_b32 s%d, s%d, 7", S_TMP, S_RB)
        A("s_lshl_b32 s%d, s%d, 1", S_TMP2, S_WAVE)
        A("s_add_u32 s%d, s%d, s%d", S_TMP, S_TMP, S_TMP2)
        A("s_sub_i32 s%d, s%d, 16", S_TMP, S_TMP)
        A("s_max_i32 s%d, s%d, 0", S_TMP, S_TMP)
        A("v_lshrrev_b32 v%d, 5, v%d", t1, V_LANE)
        A("v_add_u32 v%d, s%d, v%d", t1, S_TMP, t1)
        A("v_mul_u32_u24 v%d, 1280, v%d", t1, t1)
        A("v_and_b32 v%d, 31, v%d", t2, V_LANE)
        A("v_lshl_add_u32 v%d, v%d, 4, v%d", t1, t2, t1)

def ln_load_group(A, i4):
    t0 = ACC + 76
    A("s_movk_i32 s%d, %d", S_TMP2, i4 * 5120)
    for j in range(5):
        r = XRES + (i4 * 5 + j) * 4
        A("buffer_load_dwordx4 v[%d:%d], v%d, s[%d:%d], s%d offen offset:%d", r, r + 3, t0, S_X, S_X + 3, S_TMP2, j * 256)

def ln_load_halo(A):
    t1 = ACC + 77
    for r in range(4):
        A("v_mov_b32 v%d, 0", XRES + 88 + r)
    for j in range(2):
        r = XRES + 80 + 4 * j
        A("buffer_load_dwordx4 v[%d:%d], v%d, s[%d:%d], 0 offen offset:%d", r, r + 3, t1, S_X, S_X + 3, j * 512)
    A("s_mov_b32 exec_lo, 0x0000ffff"); A("s_mov_b32 exec_hi, 0x0000ffff")
    A("buffer_load_dwordx4 v[%d:%d], v%d, s[%d:%d], 0 offen offset:1024", XRES + 88, XRES + 91, t1, S_X, S_X + 3)
    A("s_mov_b64 exec, -1")

def ln_groups(A, groups):
    ONES = ACC + 70
    ng = len(groups)
    SUM = [ACC + 4 * i for i in range(ng)]
    TMP = ACC + 12
    lists = []
    for gi, (regs, kind) in enumerate(groups):
        L = []
        b = SUM[gi]
        for k, r in enumerate(regs):
            s_, q_ = b + 2 * (k & 1), b + 2 * (k & 1) + 1
            L.append("v_dot2_f32_bf16 v%d, v%d, v%d, %s" % (s_, r, ONES, "0" if k < 2 else "v%d" % s_))
            L.append("v_dot2_f32_bf16 v%d, v%d, v%d, %s" % (q_, r, r, "0" if k < 2 else "v%d" % q_))
        lists.append(L)
    n = max(len(l) for l in lists)
    for i in range(n):
        for l in lists:
            if i < len(l): A(l[i])
    A.nop(4)
    for gi in range(ng):
        b = SUM[gi]
        A("v_add_f32 v%d, v%d, v%d", b, b, b + 2)
        A("v_add_f32 v%d, v%d, v%d", b + 1, b + 1, b + 3)
    A.nop(2)
    for sh in (8, 4, 2, 1):
        for gi in range(ng):
            for d in range(2):
                r = SUM[gi] + d
                A("v_add_f32_dpp v%d, v%d, v%d row_ror:%d row_mask:0xf bank_mask:0xf", r, r, r, sh)
        A.nop(2)
    for gi, (regs, kind) in enumerate(groups):
        if kind == 'h':
            for d in range(2):
                A("v_mov_b32 v%d, v%d", TMP + d, SUM[gi] + d)
            A.nop(2)
            for d in range(2):
                A("v_permlane16_swap_b32 v%d, v%d", SUM[gi] + d, TMP + d)
            A.nop(2)
            for d in range(2):
                A("v_add_f32 v%d, v%d, v%d", SUM[gi] + d, SUM[gi] + d, TMP + d)
    A("s_mov_b32 s%d, 0x3acccccd", S_TMP)
    A("s_mov_b32 s%d, 0x3727c5ac", S_TMP2)
    def per(fmt, nop=0):
        for gi in range(ng):
            m, v, t = SUM[gi], SUM[gi] + 1, TMP + gi
            A(fmt.format(m=m, v=v, t=t, c=S_TMP, e=S_TMP2))
        if nop: A.nop(nop)
    per("v_mul_f32 v{m}, s{c}, v{m}")
    per("v_mul_f32 v{v}, s{c}, v{v}")
    per("v_fma_f32 v{v}, -v{m}, v{m}, v{v}")
    per("v_max_f32 v{v}, 0, v{v}")
    per("v_cvt_pk_bf16_f32 v{m}, 0, v{m}")
    per("v_cvt_pk_bf16_f32 v{v}, 0, v{v}")
    per("v_add_f32 v{v}, s{e}, v{v}")
    per("v_cvt_pk_bf16_f32 v{v}, 0, v{v}")
    per("v_sqrt_f32 v{v}, v{v}", 1)
    per("v_xor_b32 v{m}, 0x80000000, v{m}")
    per("v_cvt_pk_bf16_f32 v{v}, 0, v{v}")
    per("v_rcp_f32 v{t}, v{v}", 1)
    per("v_fma_f32 v{v}, -v{v}, v{t}, 2.0")
    per("v_mul_f32 v{v}, v{t}, v{v}")
    T = ACC + 20
    for gi, (regs, kind) in enumerate(groups):
        m = SUM[gi]
        for b in range(0, len(regs), 4):
            rr = regs[b:b + 4]
            for i, x in enumerate(rr):
                A("v_lshlrev_b32 v%d, 16, v%d", T + 2 * i, x)
                A("v_and_b32 v%d, 0xffff0000, v%d", T + 2 * i + 1, x)
            for i, x in enumerate(rr):
                A("v_pk_add_f32 v[%d:%d], v[%d:%d], v[%d:%d] op_sel_hi:[1,0]", T + 2 * i, T + 2 * i + 1, T + 2 * i, T + 2 * i + 1, m, m + 1)
            for i in range(8):
                A("v_cvt_pk_bf16_f32 v%d, 0, v%d", T + i, T + i)
            for i, x in enumerate(rr):
                A("v_pk_mul_f32 v[%d:%d], v[%d:%d], v[%d:%d] op_sel:[0,1] op_sel_hi:[1,1]", T + 2 * i, T + 2 * i + 1, T + 2 * i, T + 2 * i + 1, m, m + 1)
            for i, x in enumerate(rr):
                A("v_cvt_pk_bf16_f32 v%d, v%d, v%d", x, T + 2 * i, T + 2 * i + 1)

def ln_phase(A, typ):
    G = lambda i4: ([XRES + i4 * 20 + k for k in range(20)], 'm')
    H = ([XRES + 80 + k for k in range(12)], 'h')
    nh = 3 if typ == 'Q' else 0
    ln_addr(A, typ)
    if typ == 'Q': ln_load_halo(A)
    ln_load_group(A, 0)
    ln_load_group(A, 1)
    setup(A, typ)
    A("v_mov_b32 v%d, 0x3f803f80", ACC + 70)
    ln_load_group(A, 2)
    A("s_waitcnt vmcnt(10)")
    stamp1(A, 28, 3)
    ln_groups(A, ([H] if typ == 'Q' else []) + [G(0)])
    ln_load_group(A, 3)
    A("s_waitcnt vmcnt(10)")
    ln_groups(A, [G(1)])
    for s in range(RW - 1):
        issue_w(A, typ, s)
    A("s_waitcnt vmcnt(%d)", 5 + 2 * (RW - 1))
    stamp1(A, 29, 3)
    ln_groups(A, [G(2)])
    A("s_waitcnt vmcnt(%d)", 2 * (RW - 1))
    ln_groups(A, [G(3)])

import os
NOXW = os.environ.get("NOXW", "0") == "1"
NOBAR = os.environ.get("NOBAR", "0") == "1"
NOTR = os.environ.get("NOTR", "0") == "1"
NOMF = os.environ.get("NOMF", "0") == "1"
def x_write(A, Q, typ, gam):
    if NOXW and gam > 1: return
    base = (gam & 1) * 4 * xslot(typ)
    for i4 in range(4):
        r = XRES + (i4 * 5 + gam) * 4
        Q.op("ds_write_b128 v%d, v[%d:%d] offset:%d", V_XW + i4, r, r + 3, base)
    if typ == 'Q':
        m = 0x0000ffff if (gam & 1) == 0 else 0xffff0000
        A("s_mov_b32 exec_lo, 0x%x", m); A("s_mov_b32 exec_hi, 0x%x", m)
        r = XRES + 80 + 4 * (gam >> 1)
        Q.op("ds_write_b128 v%d, v[%d:%d] offset:%d", V_XWH, r, r + 3, base)
        A("s_mov_b64 exec, -1")

def x_read(A, Q, typ, s):
    base = (((s >> 2) & 1) * 4 + (s & 3)) * xslot(typ)
    b = A_XF + (s & 1) * 12
    last = None
    for a in range(2):
        last = Q.op("ds_read_b128 a[%d:%d], v%d offset:%d", b + 4 * a, b + 4 * a + 3, V_XR if ((s >> 2) & 1) == 0 else 35, (s & 3) * xslot(typ) + a * 1024)
    if typ == 'Q':
        last = Q.op("ds_read_b128 a[%d:%d], v%d offset:%d", b + 8, b + 11, V_XRH, base)
    return last

def w_read(A, Q, typ, s, f):
    nf = nfr(typ)
    F = s * nf + f
    buf = A_WF + (F % NB) * 4
    slot = s % RW
    st, sin = slot // 4, slot % 4
    last = None
    if NOTR and s > 0: return Q.n - 1
    for h in range(2):
        last = Q.op("ds_read_b64_tr_b16 a[%d:%d], v%d offset:%d", buf + 2 * h, buf + 2 * h + 1, V_TR + st * 11 + f, sin * WSLOT + h * 4096)
    return last

def w_read_h(A, Q, typ, s, f, h):
    nf = nfr(typ)
    F = s * nf + f
    buf = A_WF + (F % NB) * 4
    slot = s % RW
    st, sin = slot // 4, slot % 4
    if NOTR and s > 0: return Q.n - 1
    return Q.op("ds_read_b64_tr_b16 a[%d:%d], v%d offset:%d", buf + 2 * h, buf + 2 * h + 1, V_TR + st * 11 + f, sin * WSLOT + h * 4096)

def mfma_a(A, typ, s, f, a):
    nf = nfr(typ)
    F = s * nf + f
    buf = A_WF + (F % NB) * 4
    xb = A_XF + (s & 1) * 12
    W = "a[%d:%d]" % (buf, buf + 3)
    if NOMF and s > 0: return
    def one(acc, X, nor):
        C = "v[%d:%d]" % (acc, acc + 3)
        Cin = C if s > 0 else "0"
        if nor: A("v_mfma_f32_16x16x32_bf16 %s, %s, %s, %s", C, X, W, Cin)
        else:   A("v_mfma_f32_16x16x32_bf16 %s, %s, %s, %s", C, W, X, Cin)
    if typ == 'Q' and f >= 9:
        if a == 0: one(acc_of(typ, 0, f), "a[%d:%d]" % (xb + 8, xb + 11), f == 10)
    else:
        one(acc_of(typ, a, f), "a[%d:%d]" % (xb + 4 * a, xb + 4 * a + 3), typ == 'Q' and f >= 6)

def acc_of(typ, a, f):
    if typ == 'Q':
        return ACC + (a * 9 + f) * 4 if f < 9 else ACC + 72 + (f - 9) * 4
    return ACC + (a * 8 + f) * 4

def mfma(A, typ, s, f):
    nf = nfr(typ)
    F = s * nf + f
    buf = A_WF + (F % NB) * 4
    xb = A_XF + (s & 1) * 12
    W = "a[%d:%d]" % (buf, buf + 3)
    if NOMF and s > 0: return
    def one(acc, X, nor):
        C = "v[%d:%d]" % (acc, acc + 3)
        Cin = C if s > 0 else "0"
        if nor: A("v_mfma_f32_16x16x32_bf16 %s, %s, %s, %s", C, X, W, Cin)
        else:   A("v_mfma_f32_16x16x32_bf16 %s, %s, %s, %s", C, W, X, Cin)
    if typ == 'Q' and f >= 9:
        one(acc_of(typ, 0, f), "a[%d:%d]" % (xb + 8, xb + 11), f == 10)
    else:
        for a in range(2):
            one(acc_of(typ, a, f), "a[%d:%d]" % (xb + 4 * a, xb + 4 * a + 3), typ == 'Q' and f >= 6)

def main_loop(A, typ):
    Q0 = LQ(A)
    x_write(A, Q0, typ, 0)
    A("s_waitcnt lgkmcnt(0)")
    if os.environ.get("NOSTAG","0") == "1":
        main_loop_ph(A, typ, 0)
        return
    A("s_cmp_eq_u32 s%d, 0", S_HF)
    A("s_cbranch_scc0 L_k1_%s_ph1", typ)
    main_loop_ph(A, typ, 0)
    A("s_branch L_k1_%s_done", typ)
    A.label("L_k1_%s_ph1" % typ)
    main_loop_ph(A, typ, 1)
    A.label("L_k1_%s_done" % typ)

def main_loop_ph(A, typ, ph):
    nf = nfr(typ)
    Q = LQ(A)
    total = NKS * nf
    wseq = {}; xseq = {}
    doff = (nf // 2) if (ph and os.environ.get("NOSTAG","0")!="1") else 0
    pend = {}
    BAR2 = os.environ.get("BAR2", "0") == "1"
    def boundary(sn, F):
        if BAR2:
            if sn % 2 == 0:
                issued = 3 if sn <= 2 else min(sn + 1, NKS - 1)
                A("s_waitcnt vmcnt(%d)", (issued - (sn + 1)) * 2)
                if not NOBAR: A("s_barrier")
                if sn >= 2 and os.environ.get("NODMA","0") != "1":
                    k = 0
                    for st_ in (sn + 2, sn + 3):
                        if st_ < NKS:
                            pend.setdefault(F + doff + k, []).append((st_, 0))
                            pend.setdefault(F + doff + k + 2, []).append((st_, 1))
                            k += 4
                if (sn & 3) == 2 and (sn >> 2) + 1 < 5:
                    x_write(A, Q, typ, (sn >> 2) + 1)
            xseq[sn] = x_read(A, Q, typ, sn)
            return
        issued = min(sn - 1 + RW - 2, NKS - 1) if sn > 0 else RW - 2
        A("s_waitcnt vmcnt(%d)", (issued - sn) * 2)
        if not NOBAR: A("s_barrier")
        if os.environ.get("STAGE","0")=="1": stamp1(A, 8 + sn, 3)
        if (sn & 3) == 1 and (sn >> 2) + 1 < 5:
            x_write(A, Q, typ, (sn >> 2) + 1)
        xseq[sn] = x_read(A, Q, typ, sn)
        if sn > 0 and sn + RW - 2 < NKS and os.environ.get("NODMA","0") != "1":
            pend.setdefault(F + doff, []).append((sn + RW - 2, 0))
            pend.setdefault(F + doff + 2, []).append((sn + RW - 2, 1))
    boundary(0, 0)
    for F in range(AHEAD):
        wseq[F] = w_read(A, Q, typ, F // nf, F % nf)
    for F in range(total):
        s, f = F // nf, F % nf
        Fn = F + AHEAD
        if Fn < total and Fn % nf == 0:
            boundary(Fn // nf, F)
        for (st_, i_) in pend.pop(F, []):
            issue_w(A, typ, st_, only=i_)
        if F % 2 == 0:
            need = max(wseq[F], xseq[s])
            if F + 1 < total:
                need = max(need, wseq[F + 1], xseq[(F + 1) // nf])
            Q.wait(need)
        mfma_a(A, typ, s, f, 0)
        if Fn < total: w_read_h(A, Q, typ, Fn // nf, Fn % nf, 0)
        mfma_a(A, typ, s, f, 1)
        if Fn < total: wseq[Fn] = w_read_h(A, Q, typ, Fn // nf, Fn % nf, 1)
    assert not pend

def interleave(A, lists):
    n = max(len(l) for l in lists)
    for i in range(n):
        for l in lists:
            if i < len(l):
                A(l[i])

def tile_base(A, dst, a):
    A("s_lshl_b32 s%d, s%d, 3", S_TMP, S_RB)
    A("s_lshl_b32 s%d, s%d, 1", S_TMP2, S_TP)
    A("s_add_u32 s%d, s%d, s%d", S_TMP, S_TMP, S_TMP2)
    A("s_add_u32 s%d, s%d, %d", S_TMP, S_TMP, a)
    A("s_lshr_b32 s%d, s%d, 2", S_TMP2, S_TMP)
    A("s_mul_i32 s%d, s%d, %d", S_TMP2, S_TMP2, 74 * 4096)
    A("s_and_b32 s%d, s%d, 3", S_TMP, S_TMP)
    A("s_lshl_b32 s%d, s%d, 10", S_TMP, S_TMP)
    A("s_add_u32 s%d, s%d, s%d", dst, S_TMP, S_TMP2)

def h_epilogue(A):
    A.nop(16)
    T = XRES
    for a in range(2):
        tile_base(A, 48, a)
        A("s_lshl_b32 s%d, s%d, 6", S_TMP2, S_CG)
        A("s_add_u32 s48, s48, s%d", S_TMP2)
        A("s_lshl_b32 s%d, s%d, 14", S_TMP2, S_HF)
        A("s_add_u32 s48, s48, s%d", S_TMP2)
        A("s_add_u32 s48, s48, %d", 20 * 4096)
        regs = [ACC + (a * 8) * 4 + i for i in range(32)]
        for x in regs: A("v_cvt_pk_bf16_f32 v%d, 0, v%d", x, x)
        for i, x in enumerate(regs): A("v_mul_f32 v%d, 0xbfb8aa3b, v%d", T + i, x)
        for i, x in enumerate(regs): A("v_exp_f32 v%d, v%d", T + i, T + i)
        for i, x in enumerate(regs): A("v_add_f32 v%d, 1.0, v%d", T + i, T + i)
        for i, x in enumerate(regs): A("v_rcp_f32 v%d, v%d", T + i, T + i)
        for i, x in enumerate(regs): A("v_mul_f32 v%d, v%d, v%d", x, x, T + i)
        for T2 in range(4):
            o = T + 32 + 4 * T2 + 16 * a
            r0 = ACC + (a * 8 + 2 * T2) * 4
            for d in range(4):
                A("v_cvt_pk_bf16_f32 v%d, v%d, v%d", o + d, r0 + 2 * d, r0 + 2 * d + 1)
            A("buffer_store_dwordx4 v[%d:%d], v%d, s[%d:%d], s48 offen offset:%d", o, o + 3, V_L16, S_ACT, S_ACT + 3, 0)
            A("s_add_u32 s48, s48, 4096")

QP, KP, VP, TT, BP, BC, BP0, QF = 36, 48, 66, 84, 100, 104, 108, 112
EX0 = 0

def q_epilogue(A):
    A.nop(16)
    for a in range(2):
        for T in range(3):
            acc = acc_of('Q', a, T)
            A("v_cvt_pk_bf16_f32 v%d, v%d, v%d", QP + a * 6 + 2 * T, acc, acc + 1)
            A("v_cvt_pk_bf16_f32 v%d, v%d, v%d", QP + a * 6 + 2 * T + 1, acc + 2, acc + 3)
            acc = acc_of('Q', a, 3 + T)
            A("v_cvt_pk_bf16_f32 v%d, v%d, v%d", KP + (a + 1) * 6 + 2 * T, acc, acc + 1)
            A("v_cvt_pk_bf16_f32 v%d, v%d, v%d", KP + (a + 1) * 6 + 2 * T + 1, acc + 2, acc + 3)
            acc = acc_of('Q', a, 6 + T)
            A("v_cvt_pk_bf16_f32 v%d, v%d, v%d", VP + T * 6 + (a + 1) * 2, acc, acc + 1)
            A("v_cvt_pk_bf16_f32 v%d, v%d, v%d", VP + T * 6 + (a + 1) * 2 + 1, acc + 2, acc + 3)
    for hh in range(2):
        acc = acc_of('Q', 0, 9 + hh)
        A("v_cvt_pk_bf16_f32 v%d, v%d, v%d", TT + 2 * hh, acc, acc + 1)
        A("v_cvt_pk_bf16_f32 v%d, v%d, v%d", TT + 2 * hh + 1, acc + 2, acc + 3)
    ah, ar_, aw, ahl = TT + 4, TT + 5, TT + 6, TT + 7
    A("v_lshlrev_b32 v%d, 3, v%d", ah, V_LANE)
    A("s_mul_i32 s%d, s%d, 15360", S_TMP, S_HF)
    A("s_add_u32 s%d, s%d, 0x%x", S_TMP, S_TMP, EX0)
    A("v_add_u32 v%d, s%d, v%d", ah, S_TMP, ah)
    A("s_mul_i32 s%d, s%d, 3072", S_TMP, S_TP)
    A("v_add_u32 v%d, s%d, v%d", ar_, S_TMP, ah)
    A("v_add_u32 v%d, 3072, v%d", aw, ar_)
    for T in range(3):
        A("ds_write_b64 v%d, v[%d:%d] offset:%d", aw, KP + 12 + 2 * T, KP + 12 + 2 * T + 1, T * 512)
        A("ds_write_b64 v%d, v[%d:%d] offset:%d", aw, VP + T * 6 + 4, VP + T * 6 + 5, (3 + T) * 512)
    A("s_min_u32 s%d, s%d, 2", S_TMP, S_TP)
    A("s_lshl_b32 s%d, s%d, 9", S_TMP, S_TMP)
    A("v_add_u32 v%d, s%d, v%d", ahl, S_TMP, ah)
    A("ds_write_b64 v%d, v[%d:%d]", ahl, TT, TT + 1)
    A("ds_write_b64 v%d, v[%d:%d] offset:1536", ahl, TT + 2, TT + 3)
    A("s_waitcnt lgkmcnt(0)")
    A("s_barrier")
    for T in range(3):
        A("ds_read_b64 v[%d:%d], v%d offset:%d", KP + 2 * T, KP + 2 * T + 1, ar_, T * 512)
        A("ds_read_b64 v[%d:%d], v%d offset:%d", VP + T * 6, VP + T * 6 + 1, ar_, (3 + T) * 512)
    j, g4, t, neg = TT + 8, TT + 9, TT + 10, TT + 11
    A("v_and_b32 v%d, 15, v%d", j, V_LANE)
    A("v_lshrrev_b32 v%d, 4, v%d", g4, V_LANE)
    A("v_lshlrev_b32 v%d, 2, v%d", t, g4)
    A("v_sub_u32 v%d, v%d, v%d", t, j, t)
    A("v_mov_b32 v%d, v%d", j, t)
    A("v_mov_b32 v%d, 0xf149f2ca", neg)
    for r in range(4):
        A("v_subrev_u32 v%d, %d, v%d", t, r, j)
        A("v_and_b32 v%d, 0x80000001, v%d", t, t)
        A("v_cmp_eq_u32 vcc, 0, v%d", t)
        A("s_nop 1")
        A("v_cndmask_b32 v%d, v%d, 0, vcc", BC + r, neg)
        A("v_add_u32 v%d, %d, v%d", t, 16 - r, j)
        A("v_and_b32 v%d, 1, v%d", TT + 12, t)
        A("v_cmp_eq_u32 vcc, 0, v%d", TT + 12)
        A("v_cmp_ge_i32 s[30:31], 14, v%d", t)
        A("s_nop 1")
        A("s_and_b64 vcc, vcc, s[30:31]")
        A("s_nop 1")
        A("v_cndmask_b32 v%d, v%d, 0, vcc", BP + r, neg)
    A("s_or_b32 s%d, s%d, s%d", S_TMP, S_RB, S_TP)
    A("s_cmp_eq_u32 s%d, 0", S_TMP)
    A("s_cselect_b64 vcc, -1, 0")
    A("s_nop 1")
    for r in range(4):
        A("v_cndmask_b32 v%d, v%d, v%d, vcc", BP0 + r, BP + r, neg)
    A("s_mov_b32 s32, 0xaaaaaaaa"); A("s_mov_b32 s33, 0xaaaaaaaa")
    A("s_mov_b32 s34, 0xffff0000"); A("s_mov_b32 s35, 0xffffffff")
    A("s_mov_b32 s40, 0x0000ffff"); A("s_mov_b32 s41, 0")
    A("s_mov_b32 s42, 0xffffffff"); A("s_mov_b32 s43, 0")
    A("s_mov_b32 s46, 0x3e64f92e")
    A("s_mov_b32 s47, 0x3fb8aa3b")
    PM = TT + 13
    A("v_mov_b32 v%d, 0x0000ffff", PM)
    A("v_mov_b32 v%d, 0xffff0000", TT + 14)
    A("v_cndmask_b32 v%d, v%d, v%d, s[32:33]", PM, PM, TT + 14)
    SR = ACC
    for a in range(2):
        for hh in range(2):
            u = a * 2 + hh
            qa = QP + a * 6 + 2 * hh
            for d in range(2):
                if hh == 0:
                    A("v_mov_b32 v%d, v%d", QF + u * 4 + d, qa + d)
                    A("v_cndmask_b32 v%d, 0, v%d, s[40:41]", QF + u * 4 + 2 + d, qa + 2 + d)
                else:
                    A("v_cndmask_b32 v%d, 0, v%d, s[34:35]", QF + u * 4 + d, qa + d)
                    A("v_cndmask_b32 v%d, 0, v%d, s[42:43]", QF + u * 4 + 2 + d, qa + 2 + d)
    A("s_waitcnt lgkmcnt(0)")
    A.nop(2)
    for a in range(2):
        for hh in range(2):
            u = a * 2 + hh
            q = "v[%d:%d]" % (QF + u * 4, QF + u * 4 + 3)
            kp = KP + a * 6 + 2 * hh
            kc = KP + (a + 1) * 6 + 2 * hh
            bp = BP0 if a == 0 else BP
            A("v_mfma_f32_16x16x32_bf16 v[%d:%d], v[%d:%d], %s, v[%d:%d]", SR + u * 8, SR + u * 8 + 3, kp, kp + 3, q, bp, bp + 3)
            A("v_mfma_f32_16x16x32_bf16 v[%d:%d], v[%d:%d], %s, v[%d:%d]", SR + u * 8 + 4, SR + u * 8 + 7, kc, kc + 3, q, BC, BC + 3)
    A.nop(12)
    PF = QF
    lists = []
    for u in range(4):
        S = SR + u * 8
        c = [S, S + 2, S + 4, S + 6]
        m, t1 = S + 1, S + 3
        L = []
        for i in range(4): L.append("v_cndmask_b32 v%d, v%d, v%d, s[32:33]" % (c[i], c[i], c[i] + 1))
        for i in range(4): L.append("v_cvt_pk_bf16_f32 v%d, 0, v%d" % (c[i], c[i]))
        for i in range(4): L.append("v_mul_f32 v%d, s46, v%d" % (c[i], c[i]))
        for i in range(4): L.append("v_cvt_pk_bf16_f32 v%d, 0, v%d" % (c[i], c[i]))
        L.append("v_max3_f32 v%d, v%d, v%d, v%d" % (m, c[0], c[1], c[2]))
        L.append("v_max_f32 v%d, v%d, v%d" % (m, m, c[3]))
        for sw in ("v_permlane16_swap_b32", "v_permlane32_swap_b32"):
            L.append("v_mov_b32 v%d, v%d" % (t1, m))
            L.append("s_nop 0")
            L.append("%s v%d, v%d" % (sw, m, t1))
            L.append("s_nop 0")
            L.append("v_max_f32 v%d, v%d, v%d" % (m, m, t1))
        for i in range(4): L.append("v_sub_f32 v%d, v%d, v%d" % (c[i], c[i], m))
        for i in range(4): L.append("v_mul_f32 v%d, s47, v%d" % (c[i], c[i]))
        for i in range(4): L.append("v_exp_f32 v%d, v%d" % (c[i], c[i]))
        L.append("v_add_f32 v%d, v%d, v%d" % (m, c[0], c[1]))
        L.append("v_add_f32 v%d, v%d, v%d" % (t1, c[2], c[3]))
        L.append("v_add_f32 v%d, v%d, v%d" % (m, m, t1))
        for sw in ("v_permlane16_swap_b32", "v_permlane32_swap_b32"):
            L.append("v_mov_b32 v%d, v%d" % (t1, m))
            L.append("s_nop 0")
            L.append("%s v%d, v%d" % (sw, m, t1))
            L.append("s_nop 0")
            L.append("v_add_f32 v%d, v%d, v%d" % (m, m, t1))
        L.append("v_rcp_f32 v%d, v%d" % (m, m))
        L.append("s_nop 0")
        for i in range(4): L.append("v_mul_f32 v%d, v%d, v%d" % (c[i], c[i], m))
        for i in range(4): L.append("v_cvt_pk_bf16_f32 v%d, v%d, v%d" % (c[i], c[i], c[i]))
        for i in range(4): L.append("v_and_b32 v%d, v%d, v%d" % (PF + u * 4 + i, c[i], PM))
        lists.append(L)
    interleave(A, lists)
    A.nop(2)
    for a in range(2):
        for hh in range(2):
            u = a * 2 + hh
            p = "v[%d:%d]" % (PF + u * 4, PF + u * 4 + 3)
            va = VP + hh * 6 + 2 * a
            vb = VP + (hh + 1) * 6 + 2 * a
            A("v_mfma_f32_16x16x32_bf16 v[%d:%d], v[%d:%d], %s, 0", SR + u * 8, SR + u * 8 + 3, va, va + 3, p)
            A("v_mfma_f32_16x16x32_bf16 v[%d:%d], v[%d:%d], %s, 0", SR + u * 8 + 4, SR + u * 8 + 7, vb, vb + 3, p)
    ADR = TT
    A("s_mul_i32 s%d, s%d, 20", S_TMP, S_CG)
    A("s_mul_i32 s%d, s%d, 10", S_TMP2, S_HF)
    A("s_add_u32 s%d, s%d, s%d", S_TMP, S_TMP, S_TMP2)
    A("v_and_b32 v%d, 15, v%d", TT + 8, V_LANE)
    A("v_lshlrev_b32 v%d, 4, v%d", TT + 8, TT + 8)
    for T in range(3):
        G = TT + 4
        A("v_add_u32 v%d, s%d, v%d", G, S_TMP, g4)
        A("v_add_u32 v%d, %d, v%d", G, 4 * T, G)
        A("v_lshrrev_b32 v%d, 3, v%d", TT + 5, G)
        A("v_lshl_add_u32 v%d, v%d, 12, v%d", ADR + T, TT + 5, TT + 8)
        A("v_and_b32 v%d, 3, v%d", TT + 5, G)
        A("v_lshl_add_u32 v%d, v%d, 8, v%d", ADR + T, TT + 5, ADR + T)
        A("v_bfe_u32 v%d, v%d, 2, 1", TT + 5, G)
        A("v_lshl_add_u32 v%d, v%d, 3, v%d", ADR + T, TT + 5, ADR + T)
    A.nop(8)
    for u in range(4):
        for hb in range(2):
            o = SR + u * 8 + 4 * hb
            A("v_cvt_pk_bf16_f32 v%d, v%d, v%d", o, o, o + 1)
            A("v_cvt_pk_bf16_f32 v%d, v%d, v%d", o + 1, o + 2, o + 3)
    for a in range(2):
        tile_base(A, 48, a)
        uA, uB = a * 2, a * 2 + 1
        src = SR + uA * 8
        A("buffer_store_dwordx2 v[%d:%d], v%d, s[%d:%d], s48 offen", src, src + 1, ADR, S_ACT, S_ACT + 3)
        lo, hi = SR + uA * 8 + 4, SR + uB * 8
        for d in range(2):
            A("v_cndmask_b32 v%d, v%d, v%d, s[40:41]", hi + d, hi + d, lo + d)
        A("buffer_store_dwordx2 v[%d:%d], v%d, s[%d:%d], s48 offen", hi, hi + 1, ADR + 1, S_ACT, S_ACT + 3)
        src = SR + uB * 8 + 4
        A("s_mov_b32 exec_hi, 0")
        A("buffer_store_dwordx2 v[%d:%d], v%d, s[%d:%d], s48 offen", src, src + 1, ADR + 2, S_ACT, S_ACT + 3)
        A("s_mov_b32 exec_hi, -1")

def r_type(A):
    t = [ACC + i for i in range(8)]
    VD, VT = 8, 16
    A("v_and_b32 v%d, 63, v%d", V_LANE, V_TID)
    A("v_lshlrev_b32 v%d, 4, v%d", V_L16, V_LANE)
    A("s_mul_i32 s%d, s%d, 320", S_TMP, S_WAVE)
    for i in range(5):
        A("v_add_u32 v%d, s%d, v%d", t[0], S_TMP, V_LANE)
        A("v_add_u32 v%d, %d, v%d", t[0], 64 * i, t[0])
        A("v_mul_u32_u24 v%d, 3277, v%d", t[1], t[0])
        A("v_lshrrev_b32 v%d, 18, v%d", t[1], t[1])
        A("v_mul_u32_u24 v%d, 80, v%d", t[2], t[1])
        A("v_sub_u32 v%d, v%d, v%d", t[0], t[0], t[2])
        A("v_and_b32 v%d, 7, v%d", t[2], t[1])
        A("v_lshlrev_b32 v%d, 1, v%d", t[2], t[2])
        A("v_xor_b32 v%d, v%d, v%d", t[0], t[0], t[2])
        A("v_mul_u32_u24 v%d, 1280, v%d", t[1], t[1])
        A("v_lshl_add_u32 v%d, v%d, 4, v%d", VD + i, t[0], t[1])
    A("v_lshrrev_b32 v%d, 4, v%d", t[0], V_LANE)
    A("v_bfe_u32 v%d, v%d, 2, 2", t[1], V_LANE)
    A("v_and_b32 v%d, 1, v%d", t[2], t[0])
    A("v_lshl_add_u32 v%d, v%d, 2, v%d", t[2], t[2], t[1])
    A("v_lshl_add_u32 v%d, v%d, 2, v%d", t[3], t[0], t[1])
    A("v_mul_u32_u24 v%d, 1280, v%d", t[3], t[3])
    A("v_and_b32 v%d, 3, v%d", t[4], V_LANE)
    A("v_lshl_add_u32 v%d, v%d, 3, v%d", t[3], t[4], t[3])
    for i in range(5):
        A("s_mul_i32 s%d, s%d, 5", S_TMP, S_WAVE)
        A("s_add_u32 s%d, s%d, %d", S_TMP, S_TMP, i)
        A("s_and_b32 s%d, s%d, 7", S_TMP2, S_TMP)
        A("v_xor_b32 v%d, s%d, v%d", t[4], S_TMP2, t[2])
        A("v_lshl_add_u32 v%d, v%d, 5, v%d", t[4], t[4], t[3])
        A("s_lshr_b32 s%d, s%d, 3", S_TMP2, S_TMP)
        A("s_lshl_b32 s%d, s%d, 8", S_TMP2, S_TMP2)
        A("v_add_u32 v%d, s%d, v%d", VT + i, S_TMP2, t[4])
        A("v_add_u32 v%d, 0x%x, v%d", VT + 5 + i, 81920, VT + i)
    A("s_mul_i32 s%d, s%d, 5120", S_LDSW, S_WAVE)
    A("s_mov_b32 s62, 0x%x", 640 * 1280)
    A("s_mov_b32 s63, 0x%x", 1728 * 1280)
    for j in range(4):
        A("s_add_u32 s%d, s%d, %d", 72 + j, S_CG, 16 * j)
    A("s_add_u32 s76, s%d, 64", S_CG)
    A("s_cmp_lt_u32 s76, 74")
    A("s_cselect_b32 s76, s76, s75")
    def dma(j, buf):
        A("s_cmp_lt_u32 s%d, 20", 72 + j)
        A("s_cselect_b32 s8, s54, s58")
        A("s_cselect_b32 s9, s55, s59")
        A("s_cselect_b32 s10, s62, s63")
        A("s_cselect_b32 s52, 0, 20")
        A("s_and_b32 s9, s9, 0xffff")
        A("s_mov_b32 s11, 0x00020000")
        A("s_sub_u32 s51, s%d, s52", 72 + j)
        A("s_mul_i32 s51, s51, %d", 32 * 1280)
        for i in range(5):
            A("s_add_u32 m0, s%d, %d", S_LDSW, buf * 40960 + i * 1024)
            A("s_nop 0")
            A("buffer_load_dwordx4 v%d, s[8:11], s51 offen lds", VD + i)
    for j in range(4): dma(j, j)
    waits = [15, 20, 20, 20, 15]
    for j in range(5):
        buf = j % 4
        A("s_waitcnt vmcnt(%d)", waits[j])
        A("s_barrier")
        R0 = 64 + 20 * (j & 1)
        for i in range(5):
            A("ds_read_b64_tr_b16 v[%d:%d], v%d offset:%d", R0 + 4 * i, R0 + 4 * i + 1, VT + i + 5 * (buf >> 1), (buf & 1) * 40960)
            A("ds_read_b64_tr_b16 v[%d:%d], v%d offset:%d", R0 + 4 * i + 2, R0 + 4 * i + 3, VT + i + 5 * (buf >> 1), (buf & 1) * 40960 + 20480)
        A("s_waitcnt lgkmcnt(0)")
        A("s_mul_i32 s%d, s%d, 74", S_TMP, S_WAVE)
        A("s_add_u32 s%d, s%d, s%d", S_TMP, S_TMP, 72 + j)
        A("s_mul_i32 s%d, s%d, 5120", S_TMP, S_TMP)
        for i in range(5):
            if i == 4:
                A("s_add_u32 s%d, s%d, 4096", S_TMP, S_TMP)
            A("buffer_store_dwordx4 v[%d:%d], v%d, s[%d:%d], s%d offen offset:%d", R0 + 4 * i, R0 + 4 * i + 3, V_L16, S_ACT, S_ACT + 3, S_TMP, (i % 4) * 1024)
        if j == 0:
            A("s_barrier")
            dma(4, 0)

def gen_k1(name):
    A = Asm()
    A("s_cmp_ge_u32 s2, 256")
    A("s_cbranch_scc1 L_k1_end")
    A("s_load_dwordx2 s[50:51], s[0:1], 0")
    A("s_load_dwordx4 s[52:55], s[0:1], 8")
    A("s_load_dwordx4 s[56:59], s[0:1], 32")
    A("s_load_dwordx2 s[60:61], s[0:1], 64")
    A("v_lshrrev_b32 v1, 6, v0")
    A("s_nop 0")
    A("v_readfirstlane_b32 s%d, v1", S_WAVE)
    A("s_and_b32 s3, s2, 7")
    A("s_lshr_b32 s4, s2, 3")
    A("s_and_b32 s5, s3, 1")
    A("s_lshr_b32 s6, s3, 1")
    A("s_waitcnt lgkmcnt(0)")
    A("s_cmp_ge_u32 s4, 30")
    A("s_cbranch_scc1 L_k1_r")
    srd(A, S_X, 50, 51, 2048 * 1280)
    srd(A, S_ACT, 60, 61, ACT_BYTES, WS_ACT)
    stamp_init(A, 1, 60, 61, S_WAVE, 3)
    stamp(A, 0, 3)
    A("s_cmp_ge_u32 s4, 16")
    A("s_cbranch_scc1 L_k1_h")
    for typ in ('Q', 'H'):
        set_type(typ)
        if typ == 'Q':
            A("s_lshr_b32 s7, s4, 3")
            A("s_lshl_b32 s%d, s6, 1", S_CG)
            A("s_add_u32 s%d, s%d, s7", S_CG, S_CG)
            A("s_and_b32 s7, s4, 7")
            A("s_lshl_b32 s%d, s5, 3", S_RB)
            A("s_add_u32 s%d, s%d, s7", S_RB, S_RB)
            srd(A, S_W, 52, 53, 640 * 3840)
        else:
            A.label("L_k1_h")
            A("s_mul_i32 s7, s6, 14")
            A("s_add_u32 s7, s7, s4")
            A("s_sub_u32 s7, s7, 16")
            A("s_lshr_b32 s%d, s7, 3", S_CG)
            A("s_and_b32 s7, s7, 7")
            A("s_lshl_b32 s%d, s5, 3", S_RB)
            A("s_add_u32 s%d, s%d, s7", S_RB, S_RB)
            A("s_lshl_b32 s%d, s%d, 9", S_CG, S_CG)
            A("s_min_u32 s%d, s%d, 2944", S_CG, S_CG)
            srd(A, S_W, 56, 57, 640 * 3456)
        A("s_mov_b32 s%d, 0", S_WK)
        A("v_and_b32 v%d, 63, v%d", V_LANE, V_TID)
        ln_phase(A, typ)
        stamp(A, 1, 3)
        main_loop(A, typ)
        stamp(A, 2, 3)
        if typ == 'Q': q_epilogue(A)
        else: h_epilogue(A)
        stamp(A, 3, 3)
        A("s_endpgm")
    A.label("L_k1_r")
    A("s_lshl_b32 s%d, s3, 1", S_CG)
    A("s_add_u32 s%d, s%d, s4", S_CG, S_CG)
    A("s_sub_u32 s%d, s%d, 30", S_CG, S_CG)
    srd(A, S_ACT, 60, 61, WF_BYTES, WS_WF)
    r_type(A)
    A.label("L_k1_end")
    A("s_endpgm")
    return khead(name) + A.text() + kdesc(name, 256, 96, VTOT)
```
